```python
import torch

def _softmax(x, axis=-1):
    return torch.softmax(x, dim=axis)
def _gelu(x):
    return torch.nn.functional.gelu(x, approximate="tanh")
def _silu(x):
    return torch.nn.functional.silu(x)
def _sigmoid(x):
    return torch.sigmoid(x)
def _layernorm(x, axis=-1, eps=1e-5):
    m = x.mean(dim=axis, keepdim=True)
    v = x.var(dim=axis, keepdim=True, unbiased=False)
    return (x - m) / torch.sqrt(v + eps)
def _scatter_add(tgt, idx, src, axis=0):
    return tgt.clone().index_add_(axis, idx, src)
def _segment_sum(src, seg, n):
    out = torch.zeros((n,) + src.shape[1:], dtype=src.dtype)
    return out.index_add_(0, seg, src)
def _pad(x, pw):
    flat = tuple(v for pair in reversed(pw) for v in pair)
    return torch.nn.functional.pad(x, flat)

kernel_name = 'standalone__glu_gated_swiglu__prompt'

def setup_inputs():

    _w = (lambda a: (lambda t: t.to(torch.bfloat16) if t.is_floating_point() else t)(torch.as_tensor(a)))
    B, S, D, F = 1, 2048, 640, 1536
    return {
        "x": _w((lambda *s: torch.randn(*s, dtype=torch.bfloat16) * 0.05)(B, S, D)),
        "w1": _w((lambda *s: torch.randn(*s, dtype=torch.bfloat16) * 0.05)(D, F) * (2.0 / D) ** 0.5),
        "w3": _w((lambda *s: torch.randn(*s, dtype=torch.bfloat16) * 0.05)(D, F) * (2.0 / D) ** 0.5),
        "w2": _w((lambda *s: torch.randn(*s, dtype=torch.bfloat16) * 0.05)(F, D) * (2.0 / F) ** 0.5),
    }

def reference(x, w1, w3, w2):
    gate = torch.einsum("bsd,df->bsf", x, w1)
    up = torch.einsum("bsd,df->bsf", x, w3)
    h = _silu(gate) * up
    out = torch.einsum("bsf,fd->bsd", h, w2)
    return out
```

```python
import sys, argparse

KN = "standalone__glu_gated_swiglu__prompt_kernel"
STAMP_OFF = 128 << 20
H_BYTES = 2048 * 1536 * 2
FLAG_OFF = H_BYTES
WS_REC = H_BYTES + 4096


class Cfg:
    fused = True
    stamps = False
    A = 7
    SB = 2
    NX = 3
    NW = 4
    rot1 = True
    map1 = "8x4"
    rot2 = 6
    rot2mask = 1
    NH = 8
    ksplit = 10
    tail_ops = 7
    epi_ticks = 4
    rot2rb = True
    hflags = "sc1"
    spin = 60000


class E:
    def __init__(self):
        self.L = []
        self.vm = []
        self.lg = []
        self.nstamp = 0

    def __call__(self, s):
        self.L.append("    " + s)

    def label(self, s):
        self.L.append(s + ":")

    def vmem(self, s, tag=None):
        self(s)
        self.vm.append(tag)

    def ds(self, s, tag=None):
        self(s)
        self.lg.append(tag)

    @staticmethod
    def _need(q, pred):
        last = -1
        for i, t in enumerate(q):
            if pred(t):
                last = i
        return last

    def wait(self, vm=None, lg=None):
        parts = []
        if vm is not None:
            last = self._need(self.vm, vm)
            if last >= 0:
                n = len(self.vm) - 1 - last
                assert n <= 63
                parts.append(f"vmcnt({n})")
                self.vm = self.vm[last + 1:]
        if lg is not None:
            last = self._need(self.lg, lg)
            if last >= 0:
                n = len(self.lg) - 1 - last
                if n > 15:
                    n = 15
                    last = len(self.lg) - 16
                parts.append(f"lgkmcnt({n})")
                self.lg = self.lg[last + 1:]
        if parts:
            self("s_waitcnt " + " ".join(parts))

    def wait_all_lg(self):
        self.wait(lg=lambda t: True)

    def wait_all_vm(self):
        self.wait(vm=lambda t: True)

    def stamp(self, cfg, name):
        if not cfg.stamps:
            return
        r = S_STAMP + 2 * self.nstamp
        assert r + 1 <= 101
        self(f"s_memtime s[{r}:{r+1}]")
        self.nstamp += 1


S_X, S_W, S_W2, S_H, S_OUT, S_DBG = 8, 12, 16, 20, 24, 28
S_WV = 32
S_MI, S_NI, S_PHI = 33, 34, 35
S_XK, S_WK = 36, 37
S_M0X, S_M0W, S_M0Z = 38, 39, 40
S_HS = 41
S_RB, S_NJ = 44, 45
S_ZK, S_ZEND = 46, 47
S_HK, S_HEND, S_HBEG = 48, 49, 50
S_T = 52
S_NL2E = 60
S_ONE = 62
S_FLAGOFF = 64
S_SPIN = 65
S_RT0 = 66
S_STAMP = 68

V_LANE = 1
V_XO = 2
V_WO = 6
V_XA = 7
V_WA = 11
V_HST = 14
V_ZS, V_ZS2, V_ZH = 15, 16, 17
V_BA = 18
V_HL = 27
V_EXW, V_EXR = 31, 32
V_OW = 33
V_OR = 35
V_OG = 38
V_DBG = 41
V_FLG = 42
V_T = 44
V_FR = 64
V_ACC = 160
V_HB = 64
V_TB = 104
V_AG = 144
V_AK = 164

XBASE = 0
WBASE = 49152
EX_OFF = 4 * 5120
ST_OFF = 8 * 5120


def srd(e, base, ptr, size):
    e(f"s_mov_b32 s{base}, s{ptr}")
    e(f"s_and_b32 s{base+1}, s{ptr+1}, 0xffff")
    e(f"s_mov_b32 s{base+2}, {size}")
    e(f"s_mov_b32 s{base+3}, 0x20000")


def setup_common(e, cfg):
    T = S_T
    e("s_cmp_ge_u32 s2, 256")
    e("s_cbranch_scc1 L_end" + e.sfx)
    if cfg.stamps:
        e(f"s_memrealtime s[{S_RT0}:{S_RT0+1}]")
    e.stamp(cfg, "start")
    e("s_load_dwordx8 s[44:51], s[0:1], 0")
    e("s_load_dwordx4 s[52:55], s[0:1], 32")
    e("s_load_dwordx2 s[56:57], s[0:1], 48")
    e(f"v_lshrrev_b32 v{V_T}, 6, v0")
    e(f"v_and_b32 v{V_LANE}, 63, v0")
    e(f"v_readfirstlane_b32 s{S_WV}, v{V_T}")
    e("s_waitcnt lgkmcnt(0)")
    srd(e, S_X, 44, 2621440)
    e(f"s_bitcmp1_b32 s{S_WV}, 0")
    e(f"s_cselect_b32 s{S_W}, s48, s46")
    e(f"s_cselect_b32 s{S_W+1}, s49, s47")
    e(f"s_and_b32 s{S_W+1}, s{S_W+1}, 0xffff")
    e(f"s_mov_b32 s{S_W+2}, 1966080")
    e(f"s_mov_b32 s{S_W+3}, 0x20000")
    srd(e, S_W2, 50, 1966080)
    srd(e, S_OUT, 52, 2621440)
    srd(e, S_DBG, 54, 256)
    srd(e, S_H, 56, (STAMP_OFF + (1 << 20)) if cfg.stamps else WS_REC)


def setup_p1(e, cfg):
    T = S_T; L = V_LANE; t = V_T
    e(f"s_and_b32 s{T}, s2, 7")
    e(f"s_lshr_b32 s{T+1}, s2, 3")
    if cfg.map1 == "8x4":
        e(f"s_and_b32 s{T+2}, s{T}, 1"); e(f"s_lshl_b32 s{T+2}, s{T+2}, 3")
        e(f"s_and_b32 s{S_MI}, s{T+1}, 7"); e(f"s_add_u32 s{S_MI}, s{S_MI}, s{T+2}")
        e(f"s_lshr_b32 s{T+2}, s{T}, 1"); e(f"s_lshl_b32 s{T+2}, s{T+2}, 2")
        e(f"s_lshr_b32 s{S_NI}, s{T+1}, 3"); e(f"s_add_u32 s{S_NI}, s{S_NI}, s{T+2}")
        e(f"s_and_b32 s{T+2}, s{S_NI}, 3"); e(f"s_mul_i32 s{T+2}, s{T+2}, 5")
        e(f"s_lshr_b32 s{T+3}, s{S_NI}, 2"); e(f"s_add_u32 s{T+2}, s{T+2}, s{T+3}"); e(f"s_lshr_b32 s{T+2}, s{T+2}, 1")
        e(f"s_lshr_b32 s{T+3}, s{S_MI}, 3"); e(f"s_mul_i32 s{T+3}, s{T+3}, 5")
        e(f"s_and_b32 s{S_PHI}, s{S_MI}, 7")
        e(f"s_add_u32 s{S_PHI}, s{S_PHI}, s{T+2}"); e(f"s_add_u32 s{S_PHI}, s{S_PHI}, s{T+3}")
    elif cfg.map1 in ("4x8", "4x8i"):
        e(f"s_and_b32 s{T+2}, s{T}, 3"); e(f"s_lshl_b32 s{T+2}, s{T+2}, 2")
        e(f"s_and_b32 s{S_MI}, s{T+1}, 3"); e(f"s_add_u32 s{S_MI}, s{S_MI}, s{T+2}")
        e(f"s_lshr_b32 s{T+2}, s{T}, 2")
        e(f"s_lshr_b32 s{T+3}, s{T+1}, 2")
        if cfg.map1 == "4x8":
            e(f"s_lshl_b32 s{S_NI}, s{T+2}, 3"); e(f"s_add_u32 s{S_NI}, s{S_NI}, s{T+3}")
        else:
            e(f"s_lshl_b32 s{S_NI}, s{T+3}, 1"); e(f"s_add_u32 s{S_NI}, s{S_NI}, s{T+2}")
        e(f"s_mul_i32 s{T+2}, s{T+2}, 5"); e(f"s_add_u32 s{S_PHI}, s{T+2}, s{T+3}")
        e(f"s_and_b32 s{T+2}, s{S_MI}, 3"); e(f"s_mul_i32 s{T+2}, s{T+2}, 5")
        e(f"s_lshr_b32 s{T+3}, s{S_MI}, 2"); e(f"s_add_u32 s{T+2}, s{T+2}, s{T+3}"); e(f"s_lshr_b32 s{T+2}, s{T+2}, 1")
        e(f"s_add_u32 s{S_PHI}, s{S_PHI}, s{T+2}")
    elif cfg.map1 == "2x16":
        e(f"s_lshl_b32 s{T+2}, s{T}, 1")
        e(f"s_and_b32 s{S_MI}, s{T+1}, 1"); e(f"s_add_u32 s{S_MI}, s{S_MI}, s{T+2}")
        e(f"s_lshr_b32 s{S_NI}, s{T+1}, 1")
        e(f"s_mul_i32 s{T+2}, s{S_NI}, 5"); e(f"s_lshr_b32 s{T+2}, s{T+2}, 3")
        e(f"s_and_b32 s{T+3}, s{S_MI}, 1"); e(f"s_mul_i32 s{T+3}, s{T+3}, 5")
        e(f"s_add_u32 s{S_PHI}, s{T+2}, s{T+3}")
        e(f"s_mul_i32 s{T+3}, s{T}, 5"); e(f"s_lshr_b32 s{T+3}, s{T+3}, 3")
        e(f"s_add_u32 s{S_PHI}, s{S_PHI}, s{T+3}")
    for _ in range(2):
        e(f"s_sub_u32 s{T+2}, s{S_PHI}, 10"); e(f"s_cmp_ge_u32 s{S_PHI}, 10"); e(f"s_cselect_b32 s{S_PHI}, s{T+2}, s{S_PHI}")
    if not cfg.rot1:
        e(f"s_mov_b32 s{S_PHI}, 0")
    e(f"s_lshl_b32 s{S_XK}, s{S_PHI}, 7")
    e(f"s_mul_i32 s{S_WK}, s{S_PHI}, 196608")
    e(f"s_and_b32 s{T}, s{S_WV}, 1")
    e(f"s_lshr_b32 s{T+1}, s{S_WV}, 1")
    e(f"s_lshl_b32 s{T+2}, s{T}, 2")
    e(f"v_lshrrev_b32 v{t}, 4, v{L}")
    e(f"v_add_u32 v{t}, s{T+2}, v{t}")
    e(f"v_and_b32 v{t+1}, 7, v{L}")
    e(f"v_xor_b32 v{t}, v{t}, v{t+1}")
    e(f"v_lshrrev_b32 v{t+1}, 3, v{L}")
    e(f"s_lshl_b32 s{T+2}, s{S_MI}, 7"); e(f"s_lshl_b32 s{T+3}, s{S_WV}, 3"); e(f"s_add_u32 s{T+2}, s{T+2}, s{T+3}")
    e(f"v_add_u32 v{t+1}, s{T+2}, v{t+1}")
    e(f"v_mul_u32_u24 v{t+1}, 1280, v{t+1}")
    e(f"v_lshl_add_u32 v{V_XO}, v{t}, 4, v{t+1}")
    for j in range(1, 4):
        e(f"v_add_u32 v{V_XO+j}, {40960*j}, v{V_XO}")
    e(f"v_lshrrev_b32 v{t}, 2, v{L}")
    e(f"s_lshl_b32 s{T+2}, s{T+1}, 4")
    e(f"v_add_u32 v{t}, s{T+2}, v{t}")
    e(f"v_mul_u32_u24 v{t}, 3072, v{t}")
    e(f"v_and_b32 v{t+1}, 3, v{L}")
    e(f"s_lshl_b32 s{T+2}, s{T}, 1")
    e(f"v_xor_b32 v{t+1}, s{T+2}, v{t+1}")
    e(f"v_lshl_add_u32 v{t}, v{t+1}, 4, v{t}")
    e(f"s_mul_i32 s{T+2}, s{S_NI}, 192")
    e(f"v_add_u32 v{V_WO}, s{T+2}, v{t}")
    e(f"s_lshl_b32 s{S_M0X}, s{S_WV}, 10")
    e(f"s_mul_i32 s{S_M0W}, s{T}, 6144"); e(f"s_lshl_b32 s{T+2}, s{T+1}, 10"); e(f"s_add_u32 s{S_M0W}, s{S_M0W}, s{T+2}")


def setup_p1_consumer(e, cfg):
    T = S_T; L = V_LANE; t = V_T
    e(f"s_and_b32 s{T}, s{S_WV}, 1")
    e(f"s_lshr_b32 s{T+1}, s{S_WV}, 1")
    e(f"v_and_b32 v{t}, 31, v{L}")
    e(f"s_lshl_b32 s{T+2}, s{T+1}, 6")
    e(f"v_add_u32 v{t}, s{T+2}, v{t}")
    e(f"v_lshlrev_b32 v{t}, 7, v{t}")
    e(f"v_bfe_u32 v{t+1}, v{L}, 1, 3")
    e(f"v_lshrrev_b32 v{t+2}, 5, v{L}")
    e(f"v_xor_b32 v{t+1}, v{t+1}, v{t+2}")
    for s4 in range(4):
        e(f"v_xor_b32 v{t+3}, {2*s4}, v{t+1}")
        e(f"v_lshl_add_u32 v{V_XA+s4}, v{t+3}, 4, v{t}")
    e(f"v_bfe_u32 v{t}, v{L}, 4, 1")
    e(f"v_mul_u32_u24 v{t+1}, 6144, v{t}")
    e(f"v_lshl_add_u32 v{t+1}, v{t+2}, 9, v{t+1}")
    e(f"v_bfe_u32 v{t+3}, v{L}, 2, 2")
    e(f"v_lshl_add_u32 v{t+1}, v{t+3}, 6, v{t+1}")
    e(f"v_and_b32 v{t+3}, 3, v{L}")
    e(f"v_lshl_add_u32 v{t+1}, v{t+3}, 3, v{t+1}")
    e(f"s_mul_i32 s{T+2}, s{T}, 3")
    e(f"s_mul_i32 s{T+5}, s{S_NI}, 12288")
    e(f"s_lshl_b32 s{T+6}, s{S_MI}, 1"); e(f"s_add_u32 s{T+6}, s{T+6}, s{T+1}")
    e(f"s_mul_i32 s{T+7}, s{T+6}, 196608"); e(f"s_add_u32 s{T+5}, s{T+5}, s{T+7}")
    for j in range(3):
        e(f"s_add_u32 s{T+3}, s{T+2}, {j}")
        e(f"s_and_b32 s{T+4}, s{T+3}, 1")
        e(f"s_lshr_b32 s{T+3}, s{T+3}, 1")
        e(f"v_xor_b32 v{t+3}, s{T+4}, v{t}")
        e(f"v_lshl_add_u32 v{t+3}, v{t+3}, 5, v{t+1}")
        e(f"s_lshl_b32 s{T+7}, s{T+3}, 11"); e(f"s_add_u32 s{T+7}, s{T+7}, {WBASE}")
        e(f"v_add_u32 v{V_WA+j}, s{T+7}, v{t+3}")
        e(f"s_lshl_b32 s{T+3}, s{T+3}, 12"); e(f"s_lshl_b32 s{T+4}, s{T+4}, 9")
        e(f"s_add_u32 s{S_HS+j}, s{T+3}, s{T+4}"); e(f"s_add_u32 s{S_HS+j}, s{S_HS+j}, s{T+5}")
    e(f"v_lshlrev_b32 v{t}, 10, v{t}")
    e(f"v_lshl_add_u32 v{t}, v{t+2}, 8, v{t}")
    e(f"v_and_b32 v{t+1}, 15, v{L}")
    e(f"v_lshl_add_u32 v{V_HST}, v{t+1}, 4, v{t}")
    e(f"s_lshl_b32 s{T+6}, s{T+6}, 7")
    e(f"s_lshl_b32 s{T+7}, s{S_NI}, 1"); e(f"s_add_u32 s{T+7}, s{T+7}, s{T}"); e(f"s_lshl_b32 s{T+7}, s{T+7}, 2")
    e(f"s_add_u32 s{S_FLAGOFF}, s{T+6}, s{T+7}"); e(f"s_add_u32 s{S_FLAGOFF}, s{S_FLAGOFF}, {FLAG_OFF}")
    e(f"s_mov_b32 s{S_NL2E}, 0xbfb8aa3b"); e(f"s_mov_b32 s{S_NL2E+1}, 0xbfb8aa3b")
    e(f"s_mov_b32 s{S_ONE}, 1.0"); e(f"s_mov_b32 s{S_ONE+1}, 1.0")


def setup_p2(cfg):
    out = []
    e = out.append
    T = S_T; L = V_LANE; t = V_T
    e(f"s_and_b32 s{T}, s2, 7"); e(f"s_lshr_b32 s{T+1}, s2, 3")
    e(f"s_lshl_b32 s{S_RB}, s{T}, 2"); e(f"s_lshr_b32 s{T+2}, s{T+1}, 3"); e(f"s_add_u32 s{S_RB}, s{S_RB}, s{T+2}")
    e(f"s_and_b32 s{S_NJ}, s{T+1}, 7")
    e(f"s_and_b32 s{T+2}, s{S_NJ}, {cfg.rot2mask}"); e(f"s_mul_i32 s{T+2}, s{T+2}, {cfg.rot2}")
    if cfg.rot2rb:
        e(f"s_and_b32 s{T+3}, s{S_RB}, 3"); e(f"s_mul_i32 s{T+3}, s{T+3}, 3"); e(f"s_add_u32 s{T+2}, s{T+2}, s{T+3}")
        e(f"s_mul_i32 s{T+3}, s{T}, 3"); e(f"s_lshr_b32 s{T+3}, s{T+3}, 3"); e(f"s_add_u32 s{T+2}, s{T+2}, s{T+3}")
    for _ in range(2):
        e(f"s_sub_u32 s{T+3}, s{T+2}, 12"); e(f"s_cmp_ge_u32 s{T+2}, 12"); e(f"s_cselect_b32 s{T+2}, s{T+3}, s{T+2}")
    e(f"s_and_b32 s{T}, s{S_WV}, 1")
    e(f"s_lshr_b32 s{T+1}, s{S_WV}, 1")
    e(f"s_add_u32 s{T+3}, s{T+1}, s{T+2}"); e(f"s_sub_u32 s{T+4}, s{T+3}, 12")
    e(f"s_cmp_ge_u32 s{T+3}, 12"); e(f"s_cselect_b32 s{T+3}, s{T+4}, s{T+3}")
    e(f"s_mul_i32 s{T+4}, s{T}, 24"); e(f"s_add_u32 s{T+3}, s{T+3}, s{T+4}")
    e(f"s_mul_i32 s{S_ZK}, s{T+3}, 40960")
    e(f"s_add_u32 s{T+4}, s{T+4}, 12"); e(f"s_mul_i32 s{S_ZEND}, s{T+4}, 40960")
    e(f"s_mul_i32 s{S_M0Z}, s{S_WV}, 5120")
    e(f"s_mul_i32 s{S_HBEG}, s{S_RB}, 196608"); e(f"s_mul_i32 s{T+4}, s{T+1}, 98304"); e(f"s_add_u32 s{S_HBEG}, s{S_HBEG}, s{T+4}")
    e(f"s_add_u32 s{S_HEND}, s{S_HBEG}, 49152")
    e(f"s_lshl_b32 s{T+2}, s{T+2}, 12"); e(f"s_add_u32 s{S_HK}, s{S_HBEG}, s{T+2}")
    e(f"s_lshl_b32 s{T+3}, s{T}, 1"); e(f"s_add_u32 s{T+3}, s{T+3}, s{T+1}")
    e(f"s_xor_b32 s{T+4}, s{T+3}, 1")
    e(f"s_lshl_b32 s{T+5}, s{T+4}, 10"); e(f"s_lshl_b32 s{T+6}, s{T+3}, 10")
    e(f"v_lshlrev_b32 v{t}, 4, v{L}")
    e(f"v_add_u32 v{V_HL}, s{T+5}, v{t}"); e(f"v_add_u32 v{V_HL+1}, 49152, v{V_HL}")
    e(f"v_add_u32 v{V_HL+2}, s{T+6}, v{t}"); e(f"v_add_u32 v{V_HL+3}, 49152, v{V_HL+2}")
    e(f"s_add_u32 s{T+5}, s{S_M0Z}, {EX_OFF}")
    e(f"v_add_u32 v{V_EXW}, s{T+5}, v{t}")
    e(f"s_xor_b32 s{T+5}, s{S_WV}, 2"); e(f"s_mul_i32 s{T+5}, s{T+5}, 5120"); e(f"s_add_u32 s{T+5}, s{T+5}, {EX_OFF}")
    e(f"v_add_u32 v{V_EXR}, s{T+5}, v{t}")
    e(f"s_mul_i32 s{T+5}, s{S_NJ}, 160"); e(f"s_and_b32 s{T+6}, s{S_NJ}, 1"); e(f"s_lshl_b32 s{T+6}, s{T+6}, 5")
    e(f"s_add_u32 s{T+7}, s{T+5}, s{T+6}")
    e(f"v_lshrrev_b32 v{t}, 2, v{L}"); e(f"v_mul_u32_u24 v{t}, 1280, v{t}")
    e(f"v_bfe_u32 v{t+1}, v{L}, 4, 1"); e(f"v_lshlrev_b32 v{t+2}, 1, v{t+1}"); e(f"v_and_b32 v{t+3}, 3, v{L}")
    e(f"v_xor_b32 v{t+2}, v{t+2}, v{t+3}"); e(f"v_lshl_add_u32 v{t}, v{t+2}, 4, v{t}")
    e(f"v_add_u32 v{V_ZS}, s{T+7}, v{t}"); e(f"v_add_u32 v{V_ZS2}, 20480, v{V_ZS}")
    e(f"s_lshl_b32 s{T+7}, s{T+6}, 2"); e(f"s_sub_u32 s{T+7}, 128, s{T+7}"); e(f"s_add_u32 s{T+7}, s{T+7}, s{T+5}")
    e(f"v_lshrrev_b32 v{t}, 1, v{L}"); e(f"v_mul_u32_u24 v{t}, 1280, v{t}")
    e(f"v_and_b32 v{t+2}, 1, v{L}"); e(f"v_lshl_add_u32 v{t}, v{t+2}, 4, v{t}")
    e(f"v_add_u32 v{V_ZH}, s{T+7}, v{t}")
    e(f"v_lshrrev_b32 v{t}, 5, v{L}"); e(f"v_lshlrev_b32 v{t}, 4, v{t}")
    e(f"v_lshl_add_u32 v{t}, v{t+1}, 2, v{t}"); e(f"v_bfe_u32 v{t+2}, v{L}, 2, 2"); e(f"v_add_u32 v{t}, v{t}, v{t+2}")
    e(f"s_mul_i32 s{T+7}, s{T+1}, 5120")
    e(f"v_lshlrev_b32 v{t+3}, 3, v{t+3}"); e(f"v_add_u32 v{t+3}, s{T+7}, v{t+3}")
    e(f"v_lshl_add_u32 v{t+2}, v{t}, 6, v{t+3}")
    e(f"v_lshl_add_u32 v{V_BA}, v{t+1}, 5, v{t+2}")
    e(f"v_xor_b32 v{t+1}, 1, v{t+1}")
    e(f"v_lshl_add_u32 v{V_BA+1}, v{t+1}, 5, v{t+2}")
    e(f"v_lshl_add_u32 v{V_BA+2}, v{t}, 5, v{t+3}")
    for rg in (1, 2):
        for k in range(3):
            e(f"v_add_u32 v{V_BA+3*rg+k}, {61440*rg}, v{V_BA+k}")
    e(f"s_mul_i32 s{T+7}, s{S_WV}, 2816"); e(f"s_add_u32 s{T+7}, s{T+7}, {ST_OFF}")
    e(f"v_and_b32 v{t}, 15, v{L}"); e(f"v_mul_u32_u24 v{t}, 176, v{t}")
    e(f"v_lshrrev_b32 v{t+1}, 4, v{L}"); e(f"v_lshl_add_u32 v{t}, v{t+1}, 3, v{t}"); e(f"v_add_u32 v{t}, s{T+7}, v{t}")
    e(f"v_add_u32 v{V_OW}, s{T+6}, v{t}")
    e(f"s_lshl_b32 s{T+6}, s{T+6}, 2"); e(f"s_sub_u32 s{T+6}, 128, s{T+6}")
    e(f"v_add_u32 v{V_OW+1}, s{T+6}, v{t}")
    e(f"s_lshl_b32 s{T+4}, s{S_RB}, 2"); e(f"s_add_u32 s{T+4}, s{T+4}, s{T+3}"); e(f"s_mul_i32 s{T+4}, s{T+4}, 20480")
    e(f"s_add_u32 s{T+4}, s{T+4}, s{T+5}")
    for k in range(3):
        e(f"v_add_u32 v{t}, {64*k}, v{L}")
        e(f"v_mul_u32_u24 v{t+1}, 205, v{t}"); e(f"v_lshrrev_b32 v{t+1}, 11, v{t+1}")
        e(f"v_mul_u32_u24 v{t+2}, 10, v{t+1}"); e(f"v_sub_u32 v{t+2}, v{t}, v{t+2}"); e(f"v_lshlrev_b32 v{t+2}, 4, v{t+2}")
        e(f"v_mul_u32_u24 v{t+3}, 176, v{t+1}"); e(f"v_add3_u32 v{V_OR+k}, v{t+3}, v{t+2}, s{T+7}")
        e(f"v_mul_u32_u24 v{t+3}, 1280, v{t+1}"); e(f"v_add3_u32 v{V_OG+k}, v{t+3}, v{t+2}, s{T+4}")
    e(f"v_lshrrev_b32 v{t}, 5, v{L}"); e(f"v_lshlrev_b32 v{t}, 30, v{t}")
    e(f"v_add_u32 v{V_OG+2}, v{V_OG+2}, v{t}")
    e(f"s_lshl_b32 s{T+4}, s{S_RB}, 7"); e(f"s_add_u32 s{T+4}, s{T+4}, {FLAG_OFF}")
    e(f"v_and_b32 v{t}, 31, v{L}"); e(f"v_lshlrev_b32 v{t}, 2, v{t}"); e(f"v_add_u32 v{V_FLG}, s{T+4}, v{t}")
    return out


def p1_stream(cfg):
    s = [("X", 0, j) for j in range(4)] + [("W", 0, p) for p in range(3)]
    for n in range(1, 20):
        kb = (n + 1) // 2
        if kb < 10:
            h = 0 if n % 2 == 1 else 2
            if n % 2 == 1:
                s += [("X", kb, 0), ("X", kb, 1)]
            else:
                pass
        s += [("W", n, p) for p in range(3)]
        if n % 2 == 1 and kb < 10:
            s += [("X", kb, 2), ("X", kb, 3)]
    return s


def dma_items(op, cfg):
    kind, u, p = op
    out = []
    if kind == "X":
        if p == 0 and u > 0:
            out.append(("s", [f"s_add_u32 s{S_XK}, s{S_XK}, 128", f"s_cmp_eq_u32 s{S_XK}, 1280",
                              f"s_cselect_b32 s{S_XK}, 0, s{S_XK}"]))
        out.append(("s", [f"s_add_u32 m0, s{S_M0X}, {XBASE + (u % cfg.NX) * 16384 + p * 4096}"]))
        out.append(("v", f"buffer_load_dwordx4 v{V_XO+p}, s[{S_X}:{S_X+3}], s{S_XK} offen lds", op))
    elif kind == "W":
        if p == 0 and u > 0:
            out.append(("s", [f"s_add_u32 s{S_WK}, s{S_WK}, 98304", f"s_cmp_eq_u32 s{S_WK}, 1966080",
                              f"s_cselect_b32 s{S_WK}, 0, s{S_WK}"]))
        out.append(("s", [f"s_add_u32 m0, s{S_M0W}, {WBASE + (u % cfg.NW) * 12288 + p * 2048 - p * 64}"]))
        off = f" offset:{64*p}" if p else ""
        out.append(("v", f"buffer_load_dwordx4 v{V_WO}, s[{S_W}:{S_W+3}], s{S_WK} offen{off} lds", op))
    elif kind == "Z":
        if p == 0 and u > 0:
            adv = [f"s_add_u32 s{S_ZK}, s{S_ZK}, 81920", f"s_sub_u32 s{S_T}, s{S_ZK}, 491520",
                   f"s_cmp_ge_u32 s{S_ZK}, s{S_ZEND}", f"s_cselect_b32 s{S_ZK}, s{S_T}, s{S_ZK}"]
            if u == 6:
                adv += [f"s_add_u32 s{S_ZK}, s{S_ZK}, 491520", f"s_add_u32 s{S_ZEND}, s{S_ZEND}, 491520"]
            out.append(("s", adv))
        base = ((20 + 4 * u) % 32) * 5120
        vo = [V_ZS, V_ZS2, V_ZS, V_ZS2, V_ZH][p]
        io = [0, 0, 64, 64, 0][p]
        out.append(("s", [f"s_add_u32 m0, s{S_M0Z}, {base + p * 1024 - io}"]))
        off = f" offset:{io}" if io else ""
        out.append(("v", f"buffer_load_dwordx4 v{vo}, s[{S_W2}:{S_W2+3}], s{S_ZK} offen{off} lds", op))
    return out


class DmaQueue:
    def __init__(self, e, cfg, ops):
        self.e, self.cfg, self.ops, self.i, self.armed = e, cfg, list(ops), 0, None

    def left(self):
        return len(self.ops) - self.i

    def arm(self):
        op = self.ops[self.i]
        items = dma_items(op, self.cfg)
        for it in items[:-1]:
            for s in it[1]:
                self.e(s)
        self.armed = items[-1]

    def fire(self):
        self.e.vmem(self.armed[1], self.armed[2])
        self.armed = None
        self.i += 1

    def issue(self):
        self.arm()
        self.e("s_nop 0")
        self.fire()


def z_ops(k0, k1):
    return [("Z", k, p) for k in range(k0, k1) for p in range(5)]


def p1_reads(cfg, s):
    st = V_FR + 20 * (s & 1)
    xs = (s // 4) % cfg.NX
    ws = (s // 2) % cfg.NW
    def x(tb):
        return (("x", s, tb), f"ds_read_b128 v[{st+4*tb}:{st+4*tb+3}], v{V_XA + s % 4} offset:{XBASE + xs*16384 + tb*4096}")
    def w(j, jj):
        r = st + 8 + 4 * j + 2 * jj
        return (("w", s, j), f"ds_read_b64_tr_b16 v[{r}:{r+1}], v{V_WA+j} offset:{ws*12288 + (s&1)*1024 + jj*256}")
    return [x(0), w(0, 0), w(0, 1), w(1, 0), w(1, 1), x(1), w(2, 0), w(2, 1)]


def phase1(e, cfg, fill):
    stream = p1_stream(cfg)
    if cfg.fused:
        assert cfg.tail_ops <= 15
        stream = stream + z_ops(0, 3)[:cfg.tail_ops]
    q = DmaQueue(e, cfg, stream)
    bars = list(range(0, 40, cfg.SB))

    def needed(sb):
        us = range(sb, min(sb + cfg.SB, 40))
        idx = [i for i, (k, u, p) in enumerate(stream)
               if (k == "X" and u in {s // 4 for s in us}) or (k == "W" and u in {s // 2 for s in us})]
        return max(idx) + 1

    def check_space(upto, sb_done):
        for (k, u, p) in stream[:upto]:
            if k == "X":
                assert u < cfg.NX or (u - cfg.NX) * 4 + 4 <= sb_done, ("x space", u, sb_done)
            if k == "W":
                assert u < cfg.NW or (u - cfg.NW) * 2 + 2 <= sb_done, ("w space", u, sb_done)

    def is_needed(sb):
        n = needed(sb)
        ops = set(stream[:n])
        return lambda t: t in ops

    tgt = min(needed(0) + cfg.A, len(stream))
    check_space(tgt, 0)
    while q.i < tgt:
        q.issue()
    setup_p1_consumer(e, cfg)
    for ins in fill:
        e(ins)
    if cfg.fused:
        e(f"s_or_b32 s{S_T}, s2, s{S_WV}")
        e(f"s_cmp_lg_u32 s{S_T}, 0")
        e("s_cbranch_scc1 L_noclear2")
        e(f"s_waitcnt vmcnt({tgt})")
        e(f"v_mov_b32 v{V_T}, 1"); e(f"v_mov_b32 v{V_T+1}, 0")
        e("s_mov_b64 exec, 1")
        e(f"buffer_store_dword v{V_T}, v{V_T+1}, s[{S_DBG}:{S_DBG+3}], 0 offen sc1")
        e("s_mov_b64 exec, -1")
        e(f"s_waitcnt vmcnt({tgt - needed(0) + 1})")
        e("s_branch L_clear_done")
        e.label("L_noclear2")
        e.wait(vm=is_needed(0))
        e.label("L_clear_done")
    else:
        e.wait(vm=is_needed(0))
    e.stamp(cfg, "p1 first data")
    e("s_barrier")
    for tag, txt in p1_reads(cfg, 0):
        e.ds(txt, tag)
    order = [(0, 0), (1, 0), (0, 1), (1, 1), (2, 0), (2, 1)]
    for s in range(40):
        st = V_FR + 20 * (s & 1)
        nxt = p1_reads(cfg, s + 1) if s < 39 else []
        bar_here = (s + 1) in bars or (s == 39 and cfg.fused)
        nb = min([b for b in bars if b > s + 1] + [40 + cfg.SB])
        cur_b = max(b for b in bars if b <= s + 1) if s < 39 else 40
        if nb <= 38 + cfg.SB and nb < 40:
            tgt_end = min(needed(nb) + cfg.A, len(stream))
        else:
            tgt_end = len(stream)
        steps_left = (nb - 1 - s) if nb < 40 else (39 - s)
        steps_left = max(steps_left, 1)
        for g, (j, tb) in enumerate(order):
            if g == 0 and bar_here:
                e.wait_all_lg()
            else:
                e.wait(lg=lambda t: t in (("x", s, tb), ("w", s, j)))
            a = V_ACC + 16 * (tb * 3 + j)
            c = "0" if s == 0 else f"v[{a}:{a+15}]"
            e(f"v_mfma_f32_32x32x16_bf16 v[{a}:{a+15}], v[{st+8+4*j}:{st+8+4*j+3}], v[{st+4*tb}:{st+4*tb+3}], {c}")
            if g == 0 and bar_here:
                if s < 39:
                    e.wait(vm=is_needed(s + 1))
                e("s_barrier")
                if s in (3, 19):
                    e.stamp(cfg, f"p1 step {s}")
            if q.armed is not None:
                q.fire()
            for _ in range(2):
                if nxt and g < 4:
                    tag, txt = nxt.pop(0)
                    e.ds(txt, tag)
            if s < 39 and q.armed is None and q.i < tgt_end:
                gaps_left = (steps_left - 1) * 6 + (6 - g)
                rem = tgt_end - q.i
                if rem * 2 >= gaps_left - 1 or (g % 2 == 1 and rem * 3 >= gaps_left):
                    check_space(q.i + 1, cur_b)
                    q.arm()
        if s == 30 and cfg.fused:
            if q.armed is not None:
                e("s_nop 0"); q.fire()
            e(f"v_mov_b32 v{V_DBG}, 0")
            e("s_nop 0")
            e.vmem(f"buffer_load_dword v{V_DBG}, v{V_DBG}, s[{S_DBG}:{S_DBG+3}], 0 offen sc1", ("dbg",))
        if ((s + 2) in bars or s == 38) and q.armed is not None:
            e("s_nop 0"); q.fire()
        if (s + 2) in bars:
            assert q.i >= tgt_end, (s, q.i, tgt_end)
    assert q.left() == 0 and q.armed is None
    e.stamp(cfg, "p1 mfma issued")


def epilogue1(e, cfg, q):
    order = [(0, 0), (1, 0), (0, 1), (1, 1), (2, 0), (2, 1)]
    e("s_nop 7")
    for n, (j, tb) in enumerate(order):
        a = V_ACC + 16 * (tb * 3 + j)
        t = V_T + 8 * (n & 1)
        d = V_FR + 4 * n
        budget = [cfg.epi_ticks]
        def tick():
            if q is None or budget[0] == 0:
                return
            budget[0] -= 1
            if q.armed is not None:
                q.fire()
            elif q.left():
                q.arm()
        for k in range(4):
            e(f"v_pk_mul_f32 v[{t+2*k}:{t+2*k+1}], v[{a+2*k}:{a+2*k+1}], s[{S_NL2E}:{S_NL2E+1}]")
        tick()
        for k in range(8):
            e(f"v_exp_f32 v{t+k}, v{t+k}")
            if k in (1, 5):
                tick()
        for k in range(4):
            e(f"v_pk_add_f32 v[{t+2*k}:{t+2*k+1}], v[{t+2*k}:{t+2*k+1}], s[{S_ONE}:{S_ONE+1}]")
        tick()
        for k in range(8):
            e(f"v_rcp_f32 v{t+k}, v{t+k}")
            if k in (1, 5):
                tick()
        for k in range(4):
            e(f"v_pk_mul_f32 v[{t+2*k}:{t+2*k+1}], v[{t+2*k}:{t+2*k+1}], v[{a+2*k}:{a+2*k+1}]")
        for k in range(4):
            e(f"v_pk_mul_f32 v[{t+2*k}:{t+2*k+1}], v[{t+2*k}:{t+2*k+1}], v[{a+8+2*k}:{a+8+2*k+1}]")
        for k in range(4):
            e(f"v_cvt_pk_bf16_f32 v{d+k}, v{t+2*k}, v{t+2*k+1}")
        if q is not None and q.armed is not None:
            q.fire()
        off = f" offset:{tb*2048}" if tb else ""
        e.vmem(f"buffer_store_dwordx4 v[{d}:{d+3}], v{V_HST}, s[{S_H}:{S_H+3}], s{S_HS+j} offen{off} {cfg.hflags if cfg.fused else ''}", ("hst",))
    e.stamp(cfg, "h stores issued")


def b_reads(i, dst, agpr):
    slot = (20 + 2 * i) % 32
    rg, rel = divmod(slot, 12)
    out = []
    for u in range(5):
        for jj in range(2):
            r = dst + 4 * u + 2 * jj
            if u < 4:
                va, off = V_BA + 3 * rg + (u & 1), rel * 5120 + (u >> 1) * 2048 + jj * 512
            else:
                va, off = V_BA + 3 * rg + 2, rel * 5120 + 4096 + jj * 256
            out.append((("b", i, u), f"ds_read_b64_tr_b16 {'a' if agpr else 'v'}[{r}:{r+1}], v{va} offset:{off}"))
    return out


def spin_dbg(e, cfg):
    e(f"v_cmp_eq_u32 vcc, 1, v{V_DBG}")
    e("s_nop 3")
    e("s_cbranch_vccnz L_dbg_ok")
    e(f"s_mov_b32 s{S_SPIN}, {cfg.spin}")
    e.label("L_dbg_spin")
    e(f"v_mov_b32 v{V_DBG}, 0")
    e("s_sleep 2")
    e(f"buffer_load_dword v{V_DBG}, v{V_DBG}, s[{S_DBG}:{S_DBG+3}], 0 offen sc1")
    e("s_waitcnt vmcnt(0)")
    e(f"v_cmp_eq_u32 vcc, 1, v{V_DBG}")
    e("s_nop 3")
    e("s_cbranch_vccnz L_dbg_ok")
    e(f"s_sub_u32 s{S_SPIN}, s{S_SPIN}, 1")
    e(f"s_cmp_lg_u32 s{S_SPIN}, 0")
    e("s_cbranch_scc1 L_dbg_spin")
    e.label("L_dbg_ok")


def poll_flags(e, cfg):
    e(f"s_mov_b32 s{S_SPIN}, {cfg.spin}")
    e.label("L_poll")
    e(f"buffer_load_dword v{V_T}, v{V_FLG}, s[{S_H}:{S_H+3}], 0 offen sc1")
    e("s_waitcnt vmcnt(0)")
    e(f"v_cmp_ne_u32 vcc, 1, v{V_T}")
    e("s_nop 3")
    e("s_cbranch_vccz L_poll_ok")
    e(f"s_sub_u32 s{S_SPIN}, s{S_SPIN}, 1")
    e(f"s_cmp_lg_u32 s{S_SPIN}, 0")
    e("s_cbranch_scc1 L_poll")
    e.label("L_poll_ok")
    e.vm = []


def transition(e, cfg, q):
    zin = lambda k: (lambda t: t is not None and t[0] == "Z" and t[1] < k)

    def pre(i0, i1, q):
        n = 0
        for i in range(i0, i1):
            for tag, txt in b_reads(i, 20 * i, True):
                e.ds(txt, tag)
                n += 1
                if q is not None and n % 2 == 0:
                    if q.armed is not None:
                        q.fire()
                    elif q.left():
                        q.arm()
        if q is not None and q.armed is not None:
            q.fire()

    while q.left() and q.ops[q.i][1] < 4:
        q.issue()
    e.wait(vm=zin(4))
    e("s_barrier")
    pre(0, 8, q)
    while q.left():
        q.issue()
    if cfg.fused:
        e.wait(vm=lambda t: t is not None and t[0] in ("hst", "dbg"))
        e.stamp(cfg, "h stores acked")
        spin_dbg(e, cfg)
        e(f"v_mov_b32 v{V_T}, 1"); e(f"v_mov_b32 v{V_T+1}, 0")
        e("s_mov_b64 exec, 1")
        e.vmem(f"buffer_store_dword v{V_T}, v{V_T+1}, s[{S_H}:{S_H+3}], s{S_FLAGOFF} offen sc1", ("flag",))
        e("s_mov_b64 exec, -1")
    e.wait(vm=zin(6))
    e.wait_all_lg()
    e("s_barrier")
    q2 = DmaQueue(e, cfg, z_ops(8, cfg.ksplit))
    pre(8, 12, q2)
    while q2.left():
        q2.issue()
    e.stamp(cfg, "w2 staged")
    if cfg.fused:
        poll_flags(e, cfg)
    else:
        e.wait_all_vm()
    e.stamp(cfg, "flags seen")


def phase2(e, cfg):
    NH = cfg.NH
    hfl = cfg.hflags if cfg.fused else ""
    late = DmaQueue(e, cfg, z_ops(cfg.ksplit, 12))
    nload = [0]

    def hload():
        n = nload[0]
        if n >= 48:
            return
        ps, p = divmod(n, 24)
        r = V_HB + 4 * (n % NH)
        e.vmem(f"buffer_load_dwordx4 v[{r}:{r+3}], v{V_HL + 2*ps + (p & 1)}, s[{S_H}:{S_H+3}], s{S_HK} offen {hfl}", ("h", n))
        if p & 1:
            e(f"s_add_u32 s{S_HK}, s{S_HK}, 4096")
            e(f"s_cmp_eq_u32 s{S_HK}, s{S_HEND}")
            e(f"s_cselect_b32 s{S_HK}, s{S_HBEG}, s{S_HK}")
        nload[0] += 1

    for _ in range(NH - 1):
        hload()
    e.wait_all_lg()
    e("s_barrier")
    def nreads(n):
        p = n % 24
        return [((tag[0], n, tag[2]), txt) for tag, txt in b_reads(12 + p // 2, V_TB + 20 * ((n >> 1) & 1), False)]
    pend = nreads(1) + nreads(3)
    for tag, txt in pend:
        e.ds(txt, tag)
    pend = []
    first_late_i = 2 * cfg.ksplit
    late_bar_done = cfg.ksplit >= 12
    for n in range(48):
        ps, p = divmod(n, 24)
        acc = V_AG if ps == 0 else V_AK
        hb = V_HB + 4 * (n % NH)
        if n % 2 == 0 and n >= 2 and n + 3 < 48:
            i_next = 12 + ((n + 3) % 24) // 2
            if not late_bar_done and i_next >= first_late_i:
                assert late.left() == 0 and late.armed is None
                e.wait(vm=lambda t: t is not None and t[0] == "Z")
                e("s_barrier")
                late_bar_done = True
            assert not pend
            pend = nreads(n + 3)
        e.wait(vm=lambda t: t == ("h", n))
        for u in range(5):
            if p & 1:
                e.wait(lg=lambda t: t == ("b", n, u))
                r = V_TB + 20 * ((n >> 1) & 1) + 4 * u
                aop = f"v[{r}:{r+3}]"
            else:
                r = 20 * (p // 2) + 4 * u
                aop = f"a[{r}:{r+3}]"
            c = "0" if p == 0 else f"v[{acc+4*u}:{acc+4*u+3}]"
            e(f"v_mfma_f32_16x16x32_bf16 v[{acc+4*u}:{acc+4*u+3}], {aop}, v[{hb}:{hb+3}], {c}")
            if u == 0:
                hload()
            elif late.armed is not None:
                late.fire()
            elif late.left() and u in (1, 3):
                late.arm()
            if pend:
                tag, txt = pend.pop(0)
                e.ds(txt, tag)
            if n == 26:
                e.ds(f"ds_write_b128 v{V_EXW}, v[{V_AG+4*u}:{V_AG+4*u+3}] offset:{u*1024}", ("exw",))
            if n == 32:
                e.ds(f"ds_read_b128 v[{V_AG+4*u}:{V_AG+4*u+3}], v{V_EXR} offset:{u*1024}", ("exr",))
        if n == 30:
            e.wait(lg=lambda t: t == ("exw",))
            e("s_barrier")
        if n == 23:
            e.stamp(cfg, "p2 give done")
    e.stamp(cfg, "p2 mfma issued")
    e.wait_all_lg()
    e("s_nop 7")
    t = V_T
    for u in range(5):
        for k in range(2):
            e(f"v_pk_add_f32 v[{V_AK+4*u+2*k}:{V_AK+4*u+2*k+1}], v[{V_AK+4*u+2*k}:{V_AK+4*u+2*k+1}], v[{V_AG+4*u+2*k}:{V_AG+4*u+2*k+1}]")
        for k in range(2):
            e(f"v_cvt_pk_bf16_f32 v{t+2*u+k}, v{V_AK+4*u+2*k}, v{V_AK+4*u+2*k+1}")
        if u < 4:
            e.ds(f"ds_write_b64 v{V_OW}, v[{t+2*u}:{t+2*u+1}] offset:{32*u}")
        else:
            e.ds(f"ds_write_b64 v{V_OW+1}, v[{t+2*u}:{t+2*u+1}]")
    e.wait_all_lg()
    for k in range(3):
        e.ds(f"ds_read_b128 v[{V_HB+4*k}:{V_HB+4*k+3}], v{V_OR+k}", ("o", k))
    for k in range(3):
        e.wait(lg=lambda t: t == ("o", k))
        e.vmem(f"buffer_store_dwordx4 v[{V_HB+4*k}:{V_HB+4*k+3}], v{V_OG+k}, s[{S_OUT}:{S_OUT+3}], 0 offen")
    e.stamp(cfg, "out stores issued")


def write_stamps(e, cfg, base):
    if not cfg.stamps:
        return
    e("s_waitcnt vmcnt(0)")
    e.stamp(cfg, "end")
    e(f"s_memrealtime s[{S_T}:{S_T+1}]")
    e("s_waitcnt lgkmcnt(0)")
    e(f"s_cmp_lg_u32 s{S_WV}, 0")
    e("s_cbranch_scc1 L_end" + e.sfx)
    e(f"s_lshl_b32 s{S_T+2}, s2, 7"); e(f"s_add_u32 s{S_T+2}, s{S_T+2}, {STAMP_OFF + base}")
    e(f"v_mov_b32 v{V_T+1}, 0")
    vals = [f"s{S_RT0}", f"s{S_T}"]
    for i in range(1, e.nstamp):
        e(f"s_sub_u32 s{S_STAMP+2*i}, s{S_STAMP+2*i}, s{S_STAMP}")
        vals.append(f"s{S_STAMP+2*i}")
    for i, v in enumerate(vals):
        e(f"v_mov_b32 v{V_T}, {v}")
        e(f"buffer_store_dword v{V_T}, v{V_T+1}, s[{S_H}:{S_H+3}], s{S_T+2} offen offset:{4*i}")
        e("s_nop 1")


def kernel_open(e, name):
    e.L += [".text", f".globl {name}", ".p2align 8", f".type {name},@function", f"{name}:"]


def kernel_close(e, name):
    e.label("L_end" + e.sfx)
    e("s_endpgm")
    e.L += ['.section .rodata,"a"', ".p2align 6", f".amdhsa_kernel {name}",
            "  .amdhsa_next_free_vgpr 512", "  .amdhsa_next_free_sgpr 102", "  .amdhsa_accum_offset 256",
            "  .amdhsa_group_segment_fixed_size 0", "  .amdhsa_kernarg_size 56", "  .amdhsa_user_sgpr_count 2",
            "  .amdhsa_user_sgpr_kernarg_segment_ptr 1", "  .amdhsa_system_sgpr_workgroup_id_x 1",
            "  .amdhsa_float_denorm_mode_32 3", ".end_amdhsa_kernel"]


HEADER = """; SwiGLU FFN: out = (silu(x@w1) * (x@w3)) @ w2, bf16, x[2048,640] w1,w3[640,1536] w2[1536,640]
"""


def generate(cfg):
    lines = []
    if cfg.fused:
        e = E(); e.sfx = ""
        kernel_open(e, KN)
        setup_common(e, cfg)
        e(f"s_or_b32 s{S_T}, s2, s{S_WV}")
        e(f"s_cmp_lg_u32 s{S_T}, 0")
        e("s_cbranch_scc1 L_noclear")
        for k in range(4):
            e(f"v_mov_b32 v{V_T+k}, 0")
        e(f"v_lshlrev_b32 v{V_T+4}, 4, v{V_LANE}")
        e(f"s_mov_b32 s{S_T}, {FLAG_OFF}")
        for k in range(4):
            e(f"buffer_store_dwordx4 v[{V_T}:{V_T+3}], v{V_T+4}, s[{S_H}:{S_H+3}], s{S_T} offen offset:{1024*k} sc1")
        e("s_nop 1")
        e.label("L_noclear")
        setup_p1(e, cfg)
        phase1(e, cfg, setup_p2(cfg))
        q = DmaQueue(e, cfg, z_ops(0, 8)[cfg.tail_ops:])
        epilogue1(e, cfg, q)
        transition(e, cfg, q)
        phase2(e, cfg)
        write_stamps(e, cfg, 0)
        kernel_close(e, KN)
        head = HEADER + "; @launch grid=(256,1,1) block=(256,1,1) lds=163840\n"
        lines = e.L
    else:
        e = E(); e.sfx = "_a"
        kernel_open(e, "glu_p1_kernel")
        setup_common(e, cfg)
        setup_p1(e, cfg)
        phase1(e, cfg, [])
        epilogue1(e, cfg, None)
        write_stamps(e, cfg, 0)
        kernel_close(e, "glu_p1_kernel")
        e2 = E(); e2.sfx = "_b"
        kernel_open(e2, "glu_p2_kernel")
        setup_common(e2, cfg)
        for s in setup_p2(cfg):
            e2(s)
        q = DmaQueue(e2, cfg, z_ops(0, 8))
        for _ in range(20):
            q.issue()
        transition(e2, cfg, q)
        phase2(e2, cfg)
        write_stamps(e2, cfg, 64)
        kernel_close(e2, "glu_p2_kernel")
        head = HEADER + ("; @launch kernel=glu_p1_kernel grid=(256,1,1) block=(256,1,1) lds=163840\n"
                         "; @launch kernel=glu_p2_kernel grid=(256,1,1) block=(256,1,1) lds=163840\n")
        lines = e.L + e2.L
    return head + '.amdgcn_target "amdgcn-amd-amdhsa--gfx950"\n' + "\n".join(lines) + "\n"


def main():
    ap = argparse.ArgumentParser()
    ap.add_argument("-o", default="standalone__glu_gated_swiglu__prompt.s")
    ap.add_argument("opts", nargs="*")
    a = ap.parse_args()
    cfg = Cfg()
    for o in a.opts:
        k, v = o.split("=")
        cur = getattr(cfg, k)
        if isinstance(cur, bool):
            v = v not in ("0", "False", "false")
        elif isinstance(cur, int):
            v = int(v)
        setattr(cfg, k, v)
    open(a.o, "w").write(generate(cfg))


if __name__ == "__main__":
    main()
```

```python
import sys, argparse

KN = "standalone__glu_gated_swiglu__prompt_kernel"
STAMP_OFF = 128 << 20
H_BYTES = 2048 * 1536 * 2
FLAG_OFF = H_BYTES
WS_REC = H_BYTES + 4096


class Cfg:
    fused = True
    stamps = False
    A = 7
    SB = 2
    NX = 3
    NW = 4
    rot1 = True
    map1 = "8x4"
    rot2 = 6
    rot2mask = 1
    NH = 8
    ksplit = 10
    tail_ops = 7
    epi_ticks = 4
    rot2rb = True
    hflags = "sc1"
    spin = 60000
    touch = False
    oflags = ""
    pre_empty = False
    post_empty = False


class E:
    def __init__(self):
        self.L = []
        self.vm = []
        self.lg = []
        self.nstamp = 0

    def __call__(self, s):
        self.L.append("    " + s)

    def label(self, s):
        self.L.append(s + ":")

    def vmem(self, s, tag=None):
        self(s)
        self.vm.append(tag)

    def ds(self, s, tag=None):
        self(s)
        self.lg.append(tag)

    @staticmethod
    def _need(q, pred):
        last = -1
        for i, t in enumerate(q):
            if pred(t):
                last = i
        return last

    def wait(self, vm=None, lg=None):
        parts = []
        if vm is not None:
            last = self._need(self.vm, vm)
            if last >= 0:
                n = len(self.vm) - 1 - last
                assert n <= 63
                parts.append(f"vmcnt({n})")
                self.vm = self.vm[last + 1:]
        if lg is not None:
            last = self._need(self.lg, lg)
            if last >= 0:
                n = len(self.lg) - 1 - last
                if n > 15:
                    n = 15
                    last = len(self.lg) - 16
                parts.append(f"lgkmcnt({n})")
                self.lg = self.lg[last + 1:]
        if parts:
            self("s_waitcnt " + " ".join(parts))

    def wait_all_lg(self):
        self.wait(lg=lambda t: True)

    def wait_all_vm(self):
        self.wait(vm=lambda t: True)

    def stamp(self, cfg, name):
        if not cfg.stamps:
            return
        r = S_STAMP + 2 * self.nstamp
        assert r + 1 <= 101
        self(f"s_memtime s[{r}:{r+1}]")
        self.nstamp += 1


S_X, S_W, S_W2, S_H, S_OUT, S_DBG = 8, 12, 16, 20, 24, 28
S_WV = 32
S_MI, S_NI, S_PHI = 33, 34, 35
S_XK, S_WK = 36, 37
S_M0X, S_M0W, S_M0Z = 38, 39, 40
S_HS = 41
S_RB, S_NJ = 44, 45
S_ZK, S_ZEND = 46, 47
S_HK, S_HEND, S_HBEG = 48, 49, 50
S_T = 52
S_NL2E = 60
S_ONE = 62
S_FLAGOFF = 64
S_SPIN = 65
S_RT0 = 66
S_STAMP = 68

V_LANE = 1
V_XO = 2
V_WO = 6
V_XA = 7
V_WA = 11
V_HST = 14
V_ZS, V_ZS2, V_ZH = 15, 16, 17
V_BA = 18
V_HL = 27
V_EXW, V_EXR = 31, 32
V_OW = 33
V_OR = 35
V_OG = 38
V_DBG = 41
V_FLG = 42
V_T = 44
V_FR = 64
V_ACC = 160
V_HB = 64
V_TB = 104
V_AG = 144
V_AK = 164

XBASE = 0
WBASE = 49152
EX_OFF = 4 * 5120
ST_OFF = 8 * 5120


def srd(e, base, ptr, size):
    e(f"s_mov_b32 s{base}, s{ptr}")
    e(f"s_and_b32 s{base+1}, s{ptr+1}, 0xffff")
    e(f"s_mov_b32 s{base+2}, {size}")
    e(f"s_mov_b32 s{base+3}, 0x20000")


def setup_common(e, cfg):
    T = S_T
    e("s_cmp_ge_u32 s2, 256")
    e("s_cbranch_scc1 L_end" + e.sfx)
    if cfg.stamps:
        e(f"s_memrealtime s[{S_RT0}:{S_RT0+1}]")
    e.stamp(cfg, "start")
    e("s_load_dwordx8 s[44:51], s[0:1], 0")
    e("s_load_dwordx4 s[52:55], s[0:1], 32")
    e("s_load_dwordx2 s[56:57], s[0:1], 48")
    e(f"v_lshrrev_b32 v{V_T}, 6, v0")
    e(f"v_and_b32 v{V_LANE}, 63, v0")
    e(f"v_readfirstlane_b32 s{S_WV}, v{V_T}")
    e("s_waitcnt lgkmcnt(0)")
    srd(e, S_X, 44, 2621440)
    e(f"s_bitcmp1_b32 s{S_WV}, 0")
    e(f"s_cselect_b32 s{S_W}, s48, s46")
    e(f"s_cselect_b32 s{S_W+1}, s49, s47")
    e(f"s_and_b32 s{S_W+1}, s{S_W+1}, 0xffff")
    e(f"s_mov_b32 s{S_W+2}, 1966080")
    e(f"s_mov_b32 s{S_W+3}, 0x20000")
    srd(e, S_W2, 50, 1966080)
    srd(e, S_OUT, 52, 2621440)
    srd(e, S_DBG, 54, 256)
    srd(e, S_H, 56, (STAMP_OFF + (1 << 20)) if cfg.stamps else WS_REC)


def setup_p1(e, cfg):
    T = S_T; L = V_LANE; t = V_T
    e(f"s_and_b32 s{T}, s2, 7")
    e(f"s_lshr_b32 s{T+1}, s2, 3")
    if cfg.map1 == "8x4":
        e(f"s_and_b32 s{T+2}, s{T}, 1"); e(f"s_lshl_b32 s{T+2}, s{T+2}, 3")
        e(f"s_and_b32 s{S_MI}, s{T+1}, 7"); e(f"s_add_u32 s{S_MI}, s{S_MI}, s{T+2}")
        e(f"s_lshr_b32 s{T+2}, s{T}, 1"); e(f"s_lshl_b32 s{T+2}, s{T+2}, 2")
        e(f"s_lshr_b32 s{S_NI}, s{T+1}, 3"); e(f"s_add_u32 s{S_NI}, s{S_NI}, s{T+2}")
        e(f"s_and_b32 s{T+2}, s{S_NI}, 3"); e(f"s_mul_i32 s{T+2}, s{T+2}, 5")
        e(f"s_lshr_b32 s{T+3}, s{S_NI}, 2"); e(f"s_add_u32 s{T+2}, s{T+2}, s{T+3}"); e(f"s_lshr_b32 s{T+2}, s{T+2}, 1")
        e(f"s_lshr_b32 s{T+3}, s{S_MI}, 3"); e(f"s_mul_i32 s{T+3}, s{T+3}, 5")
        e(f"s_and_b32 s{S_PHI}, s{S_MI}, 7")
        e(f"s_add_u32 s{S_PHI}, s{S_PHI}, s{T+2}"); e(f"s_add_u32 s{S_PHI}, s{S_PHI}, s{T+3}")
    elif cfg.map1 in ("4x8", "4x8i"):
        e(f"s_and_b32 s{T+2}, s{T}, 3"); e(f"s_lshl_b32 s{T+2}, s{T+2}, 2")
        e(f"s_and_b32 s{S_MI}, s{T+1}, 3"); e(f"s_add_u32 s{S_MI}, s{S_MI}, s{T+2}")
        e(f"s_lshr_b32 s{T+2}, s{T}, 2")
        e(f"s_lshr_b32 s{T+3}, s{T+1}, 2")
        if cfg.map1 == "4x8":
            e(f"s_lshl_b32 s{S_NI}, s{T+2}, 3"); e(f"s_add_u32 s{S_NI}, s{S_NI}, s{T+3}")
        else:
            e(f"s_lshl_b32 s{S_NI}, s{T+3}, 1"); e(f"s_add_u32 s{S_NI}, s{S_NI}, s{T+2}")
        e(f"s_mul_i32 s{T+2}, s{T+2}, 5"); e(f"s_add_u32 s{S_PHI}, s{T+2}, s{T+3}")
        e(f"s_and_b32 s{T+2}, s{S_MI}, 3"); e(f"s_mul_i32 s{T+2}, s{T+2}, 5")
        e(f"s_lshr_b32 s{T+3}, s{S_MI}, 2"); e(f"s_add_u32 s{T+2}, s{T+2}, s{T+3}"); e(f"s_lshr_b32 s{T+2}, s{T+2}, 1")
        e(f"s_add_u32 s{S_PHI}, s{S_PHI}, s{T+2}")
    elif cfg.map1 == "2x16":
        e(f"s_lshl_b32 s{T+2}, s{T}, 1")
        e(f"s_and_b32 s{S_MI}, s{T+1}, 1"); e(f"s_add_u32 s{S_MI}, s{S_MI}, s{T+2}")
        e(f"s_lshr_b32 s{S_NI}, s{T+1}, 1")
        e(f"s_mul_i32 s{T+2}, s{S_NI}, 5"); e(f"s_lshr_b32 s{T+2}, s{T+2}, 3")
        e(f"s_and_b32 s{T+3}, s{S_MI}, 1"); e(f"s_mul_i32 s{T+3}, s{T+3}, 5")
        e(f"s_add_u32 s{S_PHI}, s{T+2}, s{T+3}")
        e(f"s_mul_i32 s{T+3}, s{T}, 5"); e(f"s_lshr_b32 s{T+3}, s{T+3}, 3")
        e(f"s_add_u32 s{S_PHI}, s{S_PHI}, s{T+3}")
    for _ in range(2):
        e(f"s_sub_u32 s{T+2}, s{S_PHI}, 10"); e(f"s_cmp_ge_u32 s{S_PHI}, 10"); e(f"s_cselect_b32 s{S_PHI}, s{T+2}, s{S_PHI}")
    if not cfg.rot1:
        e(f"s_mov_b32 s{S_PHI}, 0")
    e(f"s_lshl_b32 s{S_XK}, s{S_PHI}, 7")
    e(f"s_mul_i32 s{S_WK}, s{S_PHI}, 196608")
    e(f"s_and_b32 s{T}, s{S_WV}, 1")
    e(f"s_lshr_b32 s{T+1}, s{S_WV}, 1")
    e(f"s_lshl_b32 s{T+2}, s{T}, 2")
    e(f"v_lshrrev_b32 v{t}, 4, v{L}")
    e(f"v_add_u32 v{t}, s{T+2}, v{t}")
    e(f"v_and_b32 v{t+1}, 7, v{L}")
    e(f"v_xor_b32 v{t}, v{t}, v{t+1}")
    e(f"v_lshrrev_b32 v{t+1}, 3, v{L}")
    e(f"s_lshl_b32 s{T+2}, s{S_MI}, 7"); e(f"s_lshl_b32 s{T+3}, s{S_WV}, 3"); e(f"s_add_u32 s{T+2}, s{T+2}, s{T+3}")
    e(f"v_add_u32 v{t+1}, s{T+2}, v{t+1}")
    e(f"v_mul_u32_u24 v{t+1}, 1280, v{t+1}")
    e(f"v_lshl_add_u32 v{V_XO}, v{t}, 4, v{t+1}")
    for j in range(1, 4):
        e(f"v_add_u32 v{V_XO+j}, {40960*j}, v{V_XO}")
    e(f"v_lshrrev_b32 v{t}, 2, v{L}")
    e(f"s_lshl_b32 s{T+2}, s{T+1}, 4")
    e(f"v_add_u32 v{t}, s{T+2}, v{t}")
    e(f"v_mul_u32_u24 v{t}, 3072, v{t}")
    e(f"v_and_b32 v{t+1}, 3, v{L}")
    e(f"s_lshl_b32 s{T+2}, s{T}, 1")
    e(f"v_xor_b32 v{t+1}, s{T+2}, v{t+1}")
    e(f"v_lshl_add_u32 v{t}, v{t+1}, 4, v{t}")
    e(f"s_mul_i32 s{T+2}, s{S_NI}, 192")
    e(f"v_add_u32 v{V_WO}, s{T+2}, v{t}")
    e(f"s_lshl_b32 s{S_M0X}, s{S_WV}, 10")
    e(f"s_mul_i32 s{S_M0W}, s{T}, 6144"); e(f"s_lshl_b32 s{T+2}, s{T+1}, 10"); e(f"s_add_u32 s{S_M0W}, s{S_M0W}, s{T+2}")


def setup_p1_consumer(e, cfg):
    T = S_T; L = V_LANE; t = V_T
    e(f"s_and_b32 s{T}, s{S_WV}, 1")
    e(f"s_lshr_b32 s{T+1}, s{S_WV}, 1")
    e(f"v_and_b32 v{t}, 31, v{L}")
    e(f"s_lshl_b32 s{T+2}, s{T+1}, 6")
    e(f"v_add_u32 v{t}, s{T+2}, v{t}")
    e(f"v_lshlrev_b32 v{t}, 7, v{t}")
    e(f"v_bfe_u32 v{t+1}, v{L}, 1, 3")
    e(f"v_lshrrev_b32 v{t+2}, 5, v{L}")
    e(f"v_xor_b32 v{t+1}, v{t+1}, v{t+2}")
    for s4 in range(4):
        e(f"v_xor_b32 v{t+3}, {2*s4}, v{t+1}")
        e(f"v_lshl_add_u32 v{V_XA+s4}, v{t+3}, 4, v{t}")
    e(f"v_bfe_u32 v{t}, v{L}, 4, 1")
    e(f"v_mul_u32_u24 v{t+1}, 6144, v{t}")
    e(f"v_lshl_add_u32 v{t+1}, v{t+2}, 9, v{t+1}")
    e(f"v_bfe_u32 v{t+3}, v{L}, 2, 2")
    e(f"v_lshl_add_u32 v{t+1}, v{t+3}, 6, v{t+1}")
    e(f"v_and_b32 v{t+3}, 3, v{L}")
    e(f"v_lshl_add_u32 v{t+1}, v{t+3}, 3, v{t+1}")
    e(f"s_mul_i32 s{T+2}, s{T}, 3")
    e(f"s_mul_i32 s{T+5}, s{S_NI}, 12288")
    e(f"s_lshl_b32 s{T+6}, s{S_MI}, 1"); e(f"s_add_u32 s{T+6}, s{T+6}, s{T+1}")
    e(f"s_mul_i32 s{T+7}, s{T+6}, 196608"); e(f"s_add_u32 s{T+5}, s{T+5}, s{T+7}")
    for j in range(3):
        e(f"s_add_u32 s{T+3}, s{T+2}, {j}")
        e(f"s_and_b32 s{T+4}, s{T+3}, 1")
        e(f"s_lshr_b32 s{T+3}, s{T+3}, 1")
        e(f"v_xor_b32 v{t+3}, s{T+4}, v{t}")
        e(f"v_lshl_add_u32 v{t+3}, v{t+3}, 5, v{t+1}")
        e(f"s_lshl_b32 s{T+7}, s{T+3}, 11"); e(f"s_add_u32 s{T+7}, s{T+7}, {WBASE}")
        e(f"v_add_u32 v{V_WA+j}, s{T+7}, v{t+3}")
        e(f"s_lshl_b32 s{T+3}, s{T+3}, 12"); e(f"s_lshl_b32 s{T+4}, s{T+4}, 9")
        e(f"s_add_u32 s{S_HS+j}, s{T+3}, s{T+4}"); e(f"s_add_u32 s{S_HS+j}, s{S_HS+j}, s{T+5}")
    e(f"v_lshlrev_b32 v{t}, 10, v{t}")
    e(f"v_lshl_add_u32 v{t}, v{t+2}, 8, v{t}")
    e(f"v_and_b32 v{t+1}, 15, v{L}")
    e(f"v_lshl_add_u32 v{V_HST}, v{t+1}, 4, v{t}")
    e(f"s_lshl_b32 s{T+6}, s{T+6}, 7")
    e(f"s_lshl_b32 s{T+7}, s{S_NI}, 1"); e(f"s_add_u32 s{T+7}, s{T+7}, s{T}"); e(f"s_lshl_b32 s{T+7}, s{T+7}, 2")
    e(f"s_add_u32 s{S_FLAGOFF}, s{T+6}, s{T+7}"); e(f"s_add_u32 s{S_FLAGOFF}, s{S_FLAGOFF}, {FLAG_OFF}")
    e(f"s_mov_b32 s{S_NL2E}, 0xbfb8aa3b"); e(f"s_mov_b32 s{S_NL2E+1}, 0xbfb8aa3b")
    e(f"s_mov_b32 s{S_ONE}, 1.0"); e(f"s_mov_b32 s{S_ONE+1}, 1.0")


def setup_p2(cfg):
    out = []
    e = out.append
    T = S_T; L = V_LANE; t = V_T
    e(f"s_and_b32 s{T}, s2, 7"); e(f"s_lshr_b32 s{T+1}, s2, 3")
    e(f"s_lshl_b32 s{S_RB}, s{T}, 2"); e(f"s_lshr_b32 s{T+2}, s{T+1}, 3"); e(f"s_add_u32 s{S_RB}, s{S_RB}, s{T+2}")
    e(f"s_and_b32 s{S_NJ}, s{T+1}, 7")
    e(f"s_and_b32 s{T+2}, s{S_NJ}, {cfg.rot2mask}"); e(f"s_mul_i32 s{T+2}, s{T+2}, {cfg.rot2}")
    if cfg.rot2rb:
        e(f"s_and_b32 s{T+3}, s{S_RB}, 3"); e(f"s_mul_i32 s{T+3}, s{T+3}, 3"); e(f"s_add_u32 s{T+2}, s{T+2}, s{T+3}")
        e(f"s_mul_i32 s{T+3}, s{T}, 3"); e(f"s_lshr_b32 s{T+3}, s{T+3}, 3"); e(f"s_add_u32 s{T+2}, s{T+2}, s{T+3}")
    for _ in range(2):
        e(f"s_sub_u32 s{T+3}, s{T+2}, 12"); e(f"s_cmp_ge_u32 s{T+2}, 12"); e(f"s_cselect_b32 s{T+2}, s{T+3}, s{T+2}")
    e(f"s_and_b32 s{T}, s{S_WV}, 1")
    e(f"s_lshr_b32 s{T+1}, s{S_WV}, 1")
    e(f"s_add_u32 s{T+3}, s{T+1}, s{T+2}"); e(f"s_sub_u32 s{T+4}, s{T+3}, 12")
    e(f"s_cmp_ge_u32 s{T+3}, 12"); e(f"s_cselect_b32 s{T+3}, s{T+4}, s{T+3}")
    e(f"s_mul_i32 s{T+4}, s{T}, 24"); e(f"s_add_u32 s{T+3}, s{T+3}, s{T+4}")
    e(f"s_mul_i32 s{S_ZK}, s{T+3}, 40960")
    e(f"s_add_u32 s{T+4}, s{T+4}, 12"); e(f"s_mul_i32 s{S_ZEND}, s{T+4}, 40960")
    e(f"s_mul_i32 s{S_M0Z}, s{S_WV}, 5120")
    e(f"s_mul_i32 s{S_HBEG}, s{S_RB}, 196608"); e(f"s_mul_i32 s{T+4}, s{T+1}, 98304"); e(f"s_add_u32 s{S_HBEG}, s{S_HBEG}, s{T+4}")
    e(f"s_add_u32 s{S_HEND}, s{S_HBEG}, 49152")
    e(f"s_lshl_b32 s{T+2}, s{T+2}, 12"); e(f"s_add_u32 s{S_HK}, s{S_HBEG}, s{T+2}")
    e(f"s_lshl_b32 s{T+3}, s{T}, 1"); e(f"s_add_u32 s{T+3}, s{T+3}, s{T+1}")
    e(f"s_xor_b32 s{T+4}, s{T+3}, 1")
    e(f"s_lshl_b32 s{T+5}, s{T+4}, 10"); e(f"s_lshl_b32 s{T+6}, s{T+3}, 10")
    e(f"v_lshlrev_b32 v{t}, 4, v{L}")
    e(f"v_add_u32 v{V_HL}, s{T+5}, v{t}"); e(f"v_add_u32 v{V_HL+1}, 49152, v{V_HL}")
    e(f"v_add_u32 v{V_HL+2}, s{T+6}, v{t}"); e(f"v_add_u32 v{V_HL+3}, 49152, v{V_HL+2}")
    e(f"s_add_u32 s{T+5}, s{S_M0Z}, {EX_OFF}")
    e(f"v_add_u32 v{V_EXW}, s{T+5}, v{t}")
    e(f"s_xor_b32 s{T+5}, s{S_WV}, 2"); e(f"s_mul_i32 s{T+5}, s{T+5}, 5120"); e(f"s_add_u32 s{T+5}, s{T+5}, {EX_OFF}")
    e(f"v_add_u32 v{V_EXR}, s{T+5}, v{t}")
    e(f"s_mul_i32 s{T+5}, s{S_NJ}, 160"); e(f"s_and_b32 s{T+6}, s{S_NJ}, 1"); e(f"s_lshl_b32 s{T+6}, s{T+6}, 5")
    e(f"s_add_u32 s{T+7}, s{T+5}, s{T+6}")
    e(f"v_lshrrev_b32 v{t}, 2, v{L}"); e(f"v_mul_u32_u24 v{t}, 1280, v{t}")
    e(f"v_bfe_u32 v{t+1}, v{L}, 4, 1"); e(f"v_lshlrev_b32 v{t+2}, 1, v{t+1}"); e(f"v_and_b32 v{t+3}, 3, v{L}")
    e(f"v_xor_b32 v{t+2}, v{t+2}, v{t+3}"); e(f"v_lshl_add_u32 v{t}, v{t+2}, 4, v{t}")
    e(f"v_add_u32 v{V_ZS}, s{T+7}, v{t}"); e(f"v_add_u32 v{V_ZS2}, 20480, v{V_ZS}")
    e(f"s_lshl_b32 s{T+7}, s{T+6}, 2"); e(f"s_sub_u32 s{T+7}, 128, s{T+7}"); e(f"s_add_u32 s{T+7}, s{T+7}, s{T+5}")
    e(f"v_lshrrev_b32 v{t}, 1, v{L}"); e(f"v_mul_u32_u24 v{t}, 1280, v{t}")
    e(f"v_and_b32 v{t+2}, 1, v{L}"); e(f"v_lshl_add_u32 v{t}, v{t+2}, 4, v{t}")
    e(f"v_add_u32 v{V_ZH}, s{T+7}, v{t}")
    e(f"v_lshrrev_b32 v{t}, 5, v{L}"); e(f"v_lshlrev_b32 v{t}, 4, v{t}")
    e(f"v_lshl_add_u32 v{t}, v{t+1}, 2, v{t}"); e(f"v_bfe_u32 v{t+2}, v{L}, 2, 2"); e(f"v_add_u32 v{t}, v{t}, v{t+2}")
    e(f"s_mul_i32 s{T+7}, s{T+1}, 5120")
    e(f"v_lshlrev_b32 v{t+3}, 3, v{t+3}"); e(f"v_add_u32 v{t+3}, s{T+7}, v{t+3}")
    e(f"v_lshl_add_u32 v{t+2}, v{t}, 6, v{t+3}")
    e(f"v_lshl_add_u32 v{V_BA}, v{t+1}, 5, v{t+2}")
    e(f"v_xor_b32 v{t+1}, 1, v{t+1}")
    e(f"v_lshl_add_u32 v{V_BA+1}, v{t+1}, 5, v{t+2}")
    e(f"v_lshl_add_u32 v{V_BA+2}, v{t}, 5, v{t+3}")
    for rg in (1, 2):
        for k in range(3):
            e(f"v_add_u32 v{V_BA+3*rg+k}, {61440*rg}, v{V_BA+k}")
    e(f"s_mul_i32 s{T+7}, s{S_WV}, 2816"); e(f"s_add_u32 s{T+7}, s{T+7}, {ST_OFF}")
    e(f"v_and_b32 v{t}, 15, v{L}"); e(f"v_mul_u32_u24 v{t}, 176, v{t}")
    e(f"v_lshrrev_b32 v{t+1}, 4, v{L}"); e(f"v_lshl_add_u32 v{t}, v{t+1}, 3, v{t}"); e(f"v_add_u32 v{t}, s{T+7}, v{t}")
    e(f"v_add_u32 v{V_OW}, s{T+6}, v{t}")
    e(f"s_lshl_b32 s{T+6}, s{T+6}, 2"); e(f"s_sub_u32 s{T+6}, 128, s{T+6}")
    e(f"v_add_u32 v{V_OW+1}, s{T+6}, v{t}")
    e(f"s_lshl_b32 s{T+4}, s{S_RB}, 2"); e(f"s_add_u32 s{T+4}, s{T+4}, s{T+3}"); e(f"s_mul_i32 s{T+4}, s{T+4}, 20480")
    e(f"s_add_u32 s{T+4}, s{T+4}, s{T+5}")
    for k in range(3):
        e(f"v_add_u32 v{t}, {64*k}, v{L}")
        e(f"v_mul_u32_u24 v{t+1}, 205, v{t}"); e(f"v_lshrrev_b32 v{t+1}, 11, v{t+1}")
        e(f"v_mul_u32_u24 v{t+2}, 10, v{t+1}"); e(f"v_sub_u32 v{t+2}, v{t}, v{t+2}"); e(f"v_lshlrev_b32 v{t+2}, 4, v{t+2}")
        e(f"v_mul_u32_u24 v{t+3}, 176, v{t+1}"); e(f"v_add3_u32 v{V_OR+k}, v{t+3}, v{t+2}, s{T+7}")
        e(f"v_mul_u32_u24 v{t+3}, 1280, v{t+1}"); e(f"v_add3_u32 v{V_OG+k}, v{t+3}, v{t+2}, s{T+4}")
    e(f"v_lshrrev_b32 v{t}, 5, v{L}"); e(f"v_lshlrev_b32 v{t}, 30, v{t}")
    e(f"v_add_u32 v{V_OG+2}, v{V_OG+2}, v{t}")
    e(f"s_lshl_b32 s{T+4}, s{S_RB}, 7"); e(f"s_add_u32 s{T+4}, s{T+4}, {FLAG_OFF}")
    e(f"v_and_b32 v{t}, 31, v{L}"); e(f"v_lshlrev_b32 v{t}, 2, v{t}"); e(f"v_add_u32 v{V_FLG}, s{T+4}, v{t}")
    return out


def p1_stream(cfg):
    s = [("X", 0, j) for j in range(4)] + [("W", 0, p) for p in range(3)]
    for n in range(1, 20):
        kb = (n + 1) // 2
        if kb < 10:
            h = 0 if n % 2 == 1 else 2
            if n % 2 == 1:
                s += [("X", kb, 0), ("X", kb, 1)]
            else:
                pass
        s += [("W", n, p) for p in range(3)]
        if n % 2 == 1 and kb < 10:
            s += [("X", kb, 2), ("X", kb, 3)]
    return s


def dma_items(op, cfg):
    kind, u, p = op
    out = []
    if kind == "X":
        if p == 0 and u > 0:
            out.append(("s", [f"s_add_u32 s{S_XK}, s{S_XK}, 128", f"s_cmp_eq_u32 s{S_XK}, 1280",
                              f"s_cselect_b32 s{S_XK}, 0, s{S_XK}"]))
        out.append(("s", [f"s_add_u32 m0, s{S_M0X}, {XBASE + (u % cfg.NX) * 16384 + p * 4096}"]))
        out.append(("v", f"buffer_load_dwordx4 v{V_XO+p}, s[{S_X}:{S_X+3}], s{S_XK} offen lds", op))
    elif kind == "W":
        if p == 0 and u > 0:
            out.append(("s", [f"s_add_u32 s{S_WK}, s{S_WK}, 98304", f"s_cmp_eq_u32 s{S_WK}, 1966080",
                              f"s_cselect_b32 s{S_WK}, 0, s{S_WK}"]))
        out.append(("s", [f"s_add_u32 m0, s{S_M0W}, {WBASE + (u % cfg.NW) * 12288 + p * 2048 - p * 64}"]))
        off = f" offset:{64*p}" if p else ""
        out.append(("v", f"buffer_load_dwordx4 v{V_WO}, s[{S_W}:{S_W+3}], s{S_WK} offen{off} lds", op))
    elif kind == "Z":
        if p == 0 and u > 0:
            adv = [f"s_add_u32 s{S_ZK}, s{S_ZK}, 81920", f"s_sub_u32 s{S_T}, s{S_ZK}, 491520",
                   f"s_cmp_ge_u32 s{S_ZK}, s{S_ZEND}", f"s_cselect_b32 s{S_ZK}, s{S_T}, s{S_ZK}"]
            if u == 6:
                adv += [f"s_add_u32 s{S_ZK}, s{S_ZK}, 491520", f"s_add_u32 s{S_ZEND}, s{S_ZEND}, 491520"]
            out.append(("s", adv))
        base = ((20 + 4 * u) % 32) * 5120
        vo = [V_ZS, V_ZS2, V_ZS, V_ZS2, V_ZH][p]
        io = [0, 0, 64, 64, 0][p]
        out.append(("s", [f"s_add_u32 m0, s{S_M0Z}, {base + p * 1024 - io}"]))
        off = f" offset:{io}" if io else ""
        out.append(("v", f"buffer_load_dwordx4 v{vo}, s[{S_W2}:{S_W2+3}], s{S_ZK} offen{off} lds", op))
    return out


class DmaQueue:
    def __init__(self, e, cfg, ops):
        self.e, self.cfg, self.ops, self.i, self.armed = e, cfg, list(ops), 0, None

    def left(self):
        return len(self.ops) - self.i

    def arm(self):
        op = self.ops[self.i]
        items = dma_items(op, self.cfg)
        for it in items[:-1]:
            for s in it[1]:
                self.e(s)
        self.armed = items[-1]

    def fire(self):
        self.e.vmem(self.armed[1], self.armed[2])
        self.armed = None
        self.i += 1

    def issue(self):
        self.arm()
        self.e("s_nop 0")
        self.fire()


def z_ops(k0, k1):
    return [("Z", k, p) for k in range(k0, k1) for p in range(5)]


def p1_reads(cfg, s):
    st = V_FR + 20 * (s & 1)
    xs = (s // 4) % cfg.NX
    ws = (s // 2) % cfg.NW
    def x(tb):
        return (("x", s, tb), f"ds_read_b128 v[{st+4*tb}:{st+4*tb+3}], v{V_XA + s % 4} offset:{XBASE + xs*16384 + tb*4096}")
    def w(j, jj):
        r = st + 8 + 4 * j + 2 * jj
        return (("w", s, j), f"ds_read_b64_tr_b16 v[{r}:{r+1}], v{V_WA+j} offset:{ws*12288 + (s&1)*1024 + jj*256}")
    return [x(0), w(0, 0), w(0, 1), w(1, 0), w(1, 1), x(1), w(2, 0), w(2, 1)]


def phase1(e, cfg, fill):
    stream = p1_stream(cfg)
    if cfg.fused:
        assert cfg.tail_ops <= 15
        stream = stream + z_ops(0, 3)[:cfg.tail_ops]
    q = DmaQueue(e, cfg, stream)
    bars = list(range(0, 40, cfg.SB))

    def needed(sb):
        us = range(sb, min(sb + cfg.SB, 40))
        idx = [i for i, (k, u, p) in enumerate(stream)
               if (k == "X" and u in {s // 4 for s in us}) or (k == "W" and u in {s // 2 for s in us})]
        return max(idx) + 1

    def check_space(upto, sb_done):
        for (k, u, p) in stream[:upto]:
            if k == "X":
                assert u < cfg.NX or (u - cfg.NX) * 4 + 4 <= sb_done, ("x space", u, sb_done)
            if k == "W":
                assert u < cfg.NW or (u - cfg.NW) * 2 + 2 <= sb_done, ("w space", u, sb_done)

    def is_needed(sb):
        n = needed(sb)
        ops = set(stream[:n])
        return lambda t: t in ops

    tgt = min(needed(0) + cfg.A, len(stream))
    check_space(tgt, 0)
    while q.i < tgt:
        q.issue()
    setup_p1_consumer(e, cfg)
    for ins in fill:
        e(ins)
    if cfg.fused:
        e(f"s_or_b32 s{S_T}, s2, s{S_WV}")
        e(f"s_cmp_lg_u32 s{S_T}, 0")
        e("s_cbranch_scc1 L_noclear2")
        e(f"s_waitcnt vmcnt({tgt})")
        e(f"v_mov_b32 v{V_T}, 1"); e(f"v_mov_b32 v{V_T+1}, 0")
        e("s_mov_b64 exec, 1")
        e(f"buffer_store_dword v{V_T}, v{V_T+1}, s[{S_DBG}:{S_DBG+3}], 0 offen sc1")
        e("s_mov_b64 exec, -1")
        e(f"s_waitcnt vmcnt({tgt - needed(0) + 1})")
        e("s_branch L_clear_done")
        e.label("L_noclear2")
        e.wait(vm=is_needed(0))
        e.label("L_clear_done")
    else:
        e.wait(vm=is_needed(0))
    e.stamp(cfg, "p1 first data")
    e("s_barrier")
    for tag, txt in p1_reads(cfg, 0):
        e.ds(txt, tag)
    order = [(0, 0), (1, 0), (0, 1), (1, 1), (2, 0), (2, 1)]
    for s in range(40):
        st = V_FR + 20 * (s & 1)
        nxt = p1_reads(cfg, s + 1) if s < 39 else []
        bar_here = (s + 1) in bars or (s == 39 and cfg.fused)
        nb = min([b for b in bars if b > s + 1] + [40 + cfg.SB])
        cur_b = max(b for b in bars if b <= s + 1) if s < 39 else 40
        if nb <= 38 + cfg.SB and nb < 40:
            tgt_end = min(needed(nb) + cfg.A, len(stream))
        else:
            tgt_end = len(stream)
        steps_left = (nb - 1 - s) if nb < 40 else (39 - s)
        steps_left = max(steps_left, 1)
        for g, (j, tb) in enumerate(order):
            if g == 0 and bar_here:
                e.wait_all_lg()
            else:
                e.wait(lg=lambda t: t in (("x", s, tb), ("w", s, j)))
            a = V_ACC + 16 * (tb * 3 + j)
            c = "0" if s == 0 else f"v[{a}:{a+15}]"
            e(f"v_mfma_f32_32x32x16_bf16 v[{a}:{a+15}], v[{st+8+4*j}:{st+8+4*j+3}], v[{st+4*tb}:{st+4*tb+3}], {c}")
            if g == 0 and bar_here:
                if s < 39:
                    e.wait(vm=is_needed(s + 1))
                e("s_barrier")
                if s in (3, 19):
                    e.stamp(cfg, f"p1 step {s}")
            if q.armed is not None:
                q.fire()
            for _ in range(2):
                if nxt and g < 4:
                    tag, txt = nxt.pop(0)
                    e.ds(txt, tag)
            if s < 39 and q.armed is None and q.i < tgt_end:
                gaps_left = (steps_left - 1) * 6 + (6 - g)
                rem = tgt_end - q.i
                if rem * 2 >= gaps_left - 1 or (g % 2 == 1 and rem * 3 >= gaps_left):
                    check_space(q.i + 1, cur_b)
                    q.arm()
        if s == 30 and cfg.fused:
            if q.armed is not None:
                e("s_nop 0"); q.fire()
            e(f"v_mov_b32 v{V_DBG}, 0")
            e("s_nop 0")
            e.vmem(f"buffer_load_dword v{V_DBG}, v{V_DBG}, s[{S_DBG}:{S_DBG+3}], 0 offen sc1", ("dbg",))
        if ((s + 2) in bars or s == 38) and q.armed is not None:
            e("s_nop 0"); q.fire()
        if (s + 2) in bars:
            assert q.i >= tgt_end, (s, q.i, tgt_end)
    assert q.left() == 0 and q.armed is None
    e.stamp(cfg, "p1 mfma issued")


def epilogue1(e, cfg, q):
    order = [(0, 0), (1, 0), (0, 1), (1, 1), (2, 0), (2, 1)]
    e("s_nop 7")
    for n, (j, tb) in enumerate(order):
        a = V_ACC + 16 * (tb * 3 + j)
        t = V_T + 8 * (n & 1)
        d = V_FR + 4 * n
        budget = [cfg.epi_ticks]
        def tick():
            if q is None or budget[0] == 0:
                return
            budget[0] -= 1
            if q.armed is not None:
                q.fire()
            elif q.left():
                q.arm()
        for k in range(4):
            e(f"v_pk_mul_f32 v[{t+2*k}:{t+2*k+1}], v[{a+2*k}:{a+2*k+1}], s[{S_NL2E}:{S_NL2E+1}]")
        tick()
        for k in range(8):
            e(f"v_exp_f32 v{t+k}, v{t+k}")
            if k in (1, 5):
                tick()
        for k in range(4):
            e(f"v_pk_add_f32 v[{t+2*k}:{t+2*k+1}], v[{t+2*k}:{t+2*k+1}], s[{S_ONE}:{S_ONE+1}]")
        tick()
        for k in range(8):
            e(f"v_rcp_f32 v{t+k}, v{t+k}")
            if k in (1, 5):
                tick()
        for k in range(4):
            e(f"v_pk_mul_f32 v[{t+2*k}:{t+2*k+1}], v[{t+2*k}:{t+2*k+1}], v[{a+2*k}:{a+2*k+1}]")
        for k in range(4):
            e(f"v_pk_mul_f32 v[{t+2*k}:{t+2*k+1}], v[{t+2*k}:{t+2*k+1}], v[{a+8+2*k}:{a+8+2*k+1}]")
        for k in range(4):
            e(f"v_cvt_pk_bf16_f32 v{d+k}, v{t+2*k}, v{t+2*k+1}")
        if q is not None and q.armed is not None:
            q.fire()
        off = f" offset:{tb*2048}" if tb else ""
        e.vmem(f"buffer_store_dwordx4 v[{d}:{d+3}], v{V_HST}, s[{S_H}:{S_H+3}], s{S_HS+j} offen{off} {cfg.hflags if cfg.fused else ''}", ("hst",))
    e.stamp(cfg, "h stores issued")


def b_reads(i, dst, agpr):
    slot = (20 + 2 * i) % 32
    rg, rel = divmod(slot, 12)
    out = []
    for u in range(5):
        for jj in range(2):
            r = dst + 4 * u + 2 * jj
            if u < 4:
                va, off = V_BA + 3 * rg + (u & 1), rel * 5120 + (u >> 1) * 2048 + jj * 512
            else:
                va, off = V_BA + 3 * rg + 2, rel * 5120 + 4096 + jj * 256
            out.append((("b", i, u), f"ds_read_b64_tr_b16 {'a' if agpr else 'v'}[{r}:{r+1}], v{va} offset:{off}"))
    return out


def spin_dbg(e, cfg):
    e(f"v_cmp_eq_u32 vcc, 1, v{V_DBG}")
    e("s_nop 3")
    e("s_cbranch_vccnz L_dbg_ok")
    e(f"s_mov_b32 s{S_SPIN}, {cfg.spin}")
    e.label("L_dbg_spin")
    e(f"v_mov_b32 v{V_DBG}, 0")
    e("s_sleep 2")
    e(f"buffer_load_dword v{V_DBG}, v{V_DBG}, s[{S_DBG}:{S_DBG+3}], 0 offen sc1")
    e("s_waitcnt vmcnt(0)")
    e(f"v_cmp_eq_u32 vcc, 1, v{V_DBG}")
    e("s_nop 3")
    e("s_cbranch_vccnz L_dbg_ok")
    e(f"s_sub_u32 s{S_SPIN}, s{S_SPIN}, 1")
    e(f"s_cmp_lg_u32 s{S_SPIN}, 0")
    e("s_cbranch_scc1 L_dbg_spin")
    e.label("L_dbg_ok")


def poll_flags(e, cfg):
    e(f"s_mov_b32 s{S_SPIN}, {cfg.spin}")
    e.label("L_poll")
    e(f"buffer_load_dword v{V_T}, v{V_FLG}, s[{S_H}:{S_H+3}], 0 offen sc1")
    e("s_waitcnt vmcnt(0)")
    e(f"v_cmp_ne_u32 vcc, 1, v{V_T}")
    e("s_nop 3")
    e("s_cbranch_vccz L_poll_ok")
    e(f"s_sub_u32 s{S_SPIN}, s{S_SPIN}, 1")
    e(f"s_cmp_lg_u32 s{S_SPIN}, 0")
    e("s_cbranch_scc1 L_poll")
    e.label("L_poll_ok")
    e.vm = []


def transition(e, cfg, q):
    zin = lambda k: (lambda t: t is not None and t[0] == "Z" and t[1] < k)

    def pre(i0, i1, q):
        n = 0
        for i in range(i0, i1):
            for tag, txt in b_reads(i, 20 * i, True):
                e.ds(txt, tag)
                n += 1
                if q is not None and n % 2 == 0:
                    if q.armed is not None:
                        q.fire()
                    elif q.left():
                        q.arm()
        if q is not None and q.armed is not None:
            q.fire()

    while q.left() and q.ops[q.i][1] < 4:
        q.issue()
    e.wait(vm=zin(4))
    e("s_barrier")
    pre(0, 8, q)
    while q.left():
        q.issue()
    if cfg.fused:
        e.wait(vm=lambda t: t is not None and t[0] in ("hst", "dbg"))
        e.stamp(cfg, "h stores acked")
        spin_dbg(e, cfg)
        e(f"v_mov_b32 v{V_T}, 1"); e(f"v_mov_b32 v{V_T+1}, 0")
        e("s_mov_b64 exec, 1")
        e.vmem(f"buffer_store_dword v{V_T}, v{V_T+1}, s[{S_H}:{S_H+3}], s{S_FLAGOFF} offen sc1", ("flag",))
        e("s_mov_b64 exec, -1")
    e.wait(vm=zin(6))
    e.wait_all_lg()
    e("s_barrier")
    q2 = DmaQueue(e, cfg, z_ops(8, cfg.ksplit))
    pre(8, 12, q2)
    while q2.left():
        q2.issue()
    e.stamp(cfg, "w2 staged")
    if cfg.fused:
        poll_flags(e, cfg)
    else:
        e.wait_all_vm()
    e.stamp(cfg, "flags seen")


def phase2(e, cfg):
    NH = cfg.NH
    hfl = cfg.hflags if cfg.fused else ""
    late = DmaQueue(e, cfg, z_ops(cfg.ksplit, 12))
    nload = [0]

    def hload():
        n = nload[0]
        if n >= 48:
            return
        ps, p = divmod(n, 24)
        r = V_HB + 4 * (n % NH)
        e.vmem(f"buffer_load_dwordx4 v[{r}:{r+3}], v{V_HL + 2*ps + (p & 1)}, s[{S_H}:{S_H+3}], s{S_HK} offen {hfl}", ("h", n))
        if p & 1:
            e(f"s_add_u32 s{S_HK}, s{S_HK}, 4096")
            e(f"s_cmp_eq_u32 s{S_HK}, s{S_HEND}")
            e(f"s_cselect_b32 s{S_HK}, s{S_HBEG}, s{S_HK}")
        nload[0] += 1

    for _ in range(NH - 1):
        hload()
    e.wait_all_lg()
    e("s_barrier")
    def nreads(n):
        p = n % 24
        return [((tag[0], n, tag[2]), txt) for tag, txt in b_reads(12 + p // 2, V_TB + 20 * ((n >> 1) & 1), False)]
    pend = nreads(1) + nreads(3)
    for tag, txt in pend:
        e.ds(txt, tag)
    pend = []
    first_late_i = 2 * cfg.ksplit
    late_bar_done = cfg.ksplit >= 12
    for n in range(48):
        ps, p = divmod(n, 24)
        acc = V_AG if ps == 0 else V_AK
        hb = V_HB + 4 * (n % NH)
        if n % 2 == 0 and n >= 2 and n + 3 < 48:
            i_next = 12 + ((n + 3) % 24) // 2
            if not late_bar_done and i_next >= first_late_i:
                assert late.left() == 0 and late.armed is None
                e.wait(vm=lambda t: t is not None and t[0] == "Z")
                e("s_barrier")
                late_bar_done = True
            assert not pend
            pend = nreads(n + 3)
        e.wait(vm=lambda t: t == ("h", n))
        for u in range(5):
            if p & 1:
                e.wait(lg=lambda t: t == ("b", n, u))
                r = V_TB + 20 * ((n >> 1) & 1) + 4 * u
                aop = f"v[{r}:{r+3}]"
            else:
                r = 20 * (p // 2) + 4 * u
                aop = f"a[{r}:{r+3}]"
            c = "0" if p == 0 else f"v[{acc+4*u}:{acc+4*u+3}]"
            e(f"v_mfma_f32_16x16x32_bf16 v[{acc+4*u}:{acc+4*u+3}], {aop}, v[{hb}:{hb+3}], {c}")
            if u == 0:
                hload()
            elif late.armed is not None:
                late.fire()
            elif late.left() and u in (1, 3):
                late.arm()
            if pend:
                tag, txt = pend.pop(0)
                e.ds(txt, tag)
            if n == 26:
                e.ds(f"ds_write_b128 v{V_EXW}, v[{V_AG+4*u}:{V_AG+4*u+3}] offset:{u*1024}", ("exw",))
            if n == 32:
                e.ds(f"ds_read_b128 v[{V_AG+4*u}:{V_AG+4*u+3}], v{V_EXR} offset:{u*1024}", ("exr",))
        if n == 30:
            e.wait(lg=lambda t: t == ("exw",))
            e("s_barrier")
        if n == 23:
            e.stamp(cfg, "p2 give done")
    e.stamp(cfg, "p2 mfma issued")
    e.wait_all_lg()
    e("s_nop 7")
    t = V_T
    for u in range(5):
        for k in range(2):
            e(f"v_pk_add_f32 v[{V_AK+4*u+2*k}:{V_AK+4*u+2*k+1}], v[{V_AK+4*u+2*k}:{V_AK+4*u+2*k+1}], v[{V_AG+4*u+2*k}:{V_AG+4*u+2*k+1}]")
        for k in range(2):
            e(f"v_cvt_pk_bf16_f32 v{t+2*u+k}, v{V_AK+4*u+2*k}, v{V_AK+4*u+2*k+1}")
        if u < 4:
            e.ds(f"ds_write_b64 v{V_OW}, v[{t+2*u}:{t+2*u+1}] offset:{32*u}")
        else:
            e.ds(f"ds_write_b64 v{V_OW+1}, v[{t+2*u}:{t+2*u+1}]")
    e.wait_all_lg()
    for k in range(3):
        e.ds(f"ds_read_b128 v[{V_HB+4*k}:{V_HB+4*k+3}], v{V_OR+k}", ("o", k))
    for k in range(3):
        e.wait(lg=lambda t: t == ("o", k))
        e.vmem(f"buffer_store_dwordx4 v[{V_HB+4*k}:{V_HB+4*k+3}], v{V_OG+k}, s[{S_OUT}:{S_OUT+3}], 0 offen {cfg.oflags}")
    e.stamp(cfg, "out stores issued")


def write_stamps(e, cfg, base):
    if not cfg.stamps:
        return
    e("s_waitcnt vmcnt(0)")
    e.stamp(cfg, "end")
    e(f"s_memrealtime s[{S_T}:{S_T+1}]")
    e("s_waitcnt lgkmcnt(0)")
    e(f"s_cmp_lg_u32 s{S_WV}, 0")
    e("s_cbranch_scc1 L_end" + e.sfx)
    e(f"s_lshl_b32 s{S_T+2}, s2, 7"); e(f"s_add_u32 s{S_T+2}, s{S_T+2}, {STAMP_OFF + base}")
    e(f"v_mov_b32 v{V_T+1}, 0")
    vals = [f"s{S_RT0}", f"s{S_T}"]
    for i in range(1, e.nstamp):
        e(f"s_sub_u32 s{S_STAMP+2*i}, s{S_STAMP+2*i}, s{S_STAMP}")
        vals.append(f"s{S_STAMP+2*i}")
    for i, v in enumerate(vals):
        e(f"v_mov_b32 v{V_T}, {v}")
        e(f"buffer_store_dword v{V_T}, v{V_T+1}, s[{S_H}:{S_H+3}], s{S_T+2} offen offset:{4*i}")
        e("s_nop 1")


def kernel_open(e, name):
    e.L += [".text", f".globl {name}", ".p2align 8", f".type {name},@function", f"{name}:"]


def kernel_close(e, name):
    e.label("L_end" + e.sfx)
    e("s_endpgm")
    e.L += ['.section .rodata,"a"', ".p2align 6", f".amdhsa_kernel {name}",
            "  .amdhsa_next_free_vgpr 512", "  .amdhsa_next_free_sgpr 102", "  .amdhsa_accum_offset 256",
            "  .amdhsa_group_segment_fixed_size 0", "  .amdhsa_kernarg_size 56", "  .amdhsa_user_sgpr_count 2",
            "  .amdhsa_user_sgpr_kernarg_segment_ptr 1", "  .amdhsa_system_sgpr_workgroup_id_x 1",
            "  .amdhsa_float_denorm_mode_32 3", ".end_amdhsa_kernel"]


HEADER = """; SwiGLU FFN: out = (silu(x@w1) * (x@w3)) @ w2, bf16, x[2048,640] w1,w3[640,1536] w2[1536,640]
"""


def generate(cfg):
    lines = []
    if cfg.fused:
        e = E(); e.sfx = ""
        kernel_open(e, KN)
        setup_common(e, cfg)
        e(f"s_or_b32 s{S_T}, s2, s{S_WV}")
        e(f"s_cmp_lg_u32 s{S_T}, 0")
        e("s_cbranch_scc1 L_noclear")
        for k in range(4):
            e(f"v_mov_b32 v{V_T+k}, 0")
        e(f"v_lshlrev_b32 v{V_T+4}, 4, v{V_LANE}")
        e(f"s_mov_b32 s{S_T}, {FLAG_OFF}")
        for k in range(4):
            e(f"buffer_store_dwordx4 v[{V_T}:{V_T+3}], v{V_T+4}, s[{S_H}:{S_H+3}], s{S_T} offen offset:{1024*k} sc1")
        e("s_nop 1")
        e.label("L_noclear")
        if cfg.touch:
            e(f"v_lshlrev_b32 v{V_T+8}, 17, v{V_LANE}")
            e(f"v_lshlrev_b32 v{V_T+9}, 16, v{V_LANE}")
            e(f"buffer_load_dword v{V_T+10}, v{V_T+8}, s[{S_H}:{S_H+3}], 0 offen")
            e(f"buffer_load_dword v{V_T+11}, v{V_T+9}, s[{S_OUT}:{S_OUT+3}], 0 offen")
            e(f"buffer_load_dword v{V_T+12}, v{V_T+9}, s[{S_W2}:{S_W2+3}], 0 offen")
        setup_p1(e, cfg)
        phase1(e, cfg, setup_p2(cfg))
        q = DmaQueue(e, cfg, z_ops(0, 8)[cfg.tail_ops:])
        epilogue1(e, cfg, q)
        transition(e, cfg, q)
        phase2(e, cfg)
        write_stamps(e, cfg, 0)
        kernel_close(e, KN)
        head = HEADER + "; @launch grid=(256,1,1) block=(256,1,1) lds=163840\n"
        lines = e.L
        if cfg.pre_empty or cfg.post_empty:
            main = f"; @launch kernel={KN} grid=(256,1,1) block=(256,1,1) lds=163840\n"
            emp = "; @launch kernel=nop_kernel grid=(1,1,1) block=(64,1,1) lds=0\n"
            head = HEADER + (emp if cfg.pre_empty else "") + main + (emp if cfg.post_empty else "")
            e3 = E(); e3.sfx = "_n"
            kernel_open(e3, "nop_kernel")
            kernel_close(e3, "nop_kernel")
            lines = lines + e3.L
    else:
        e = E(); e.sfx = "_a"
        kernel_open(e, "glu_p1_kernel")
        setup_common(e, cfg)
        setup_p1(e, cfg)
        phase1(e, cfg, [])
        epilogue1(e, cfg, None)
        write_stamps(e, cfg, 0)
        kernel_close(e, "glu_p1_kernel")
        e2 = E(); e2.sfx = "_b"
        kernel_open(e2, "glu_p2_kernel")
        setup_common(e2, cfg)
        for s in setup_p2(cfg):
            e2(s)
        q = DmaQueue(e2, cfg, z_ops(0, 8))
        for _ in range(20):
            q.issue()
        transition(e2, cfg, q)
        phase2(e2, cfg)
        write_stamps(e2, cfg, 64)
        kernel_close(e2, "glu_p2_kernel")
        head = HEADER + ("; @launch kernel=glu_p1_kernel grid=(256,1,1) block=(256,1,1) lds=163840\n"
                         "; @launch kernel=glu_p2_kernel grid=(256,1,1) block=(256,1,1) lds=163840\n")
        lines = e.L + e2.L
    return head + '.amdgcn_target "amdgcn-amd-amdhsa--gfx950"\n' + "\n".join(lines) + "\n"


def main():
    ap = argparse.ArgumentParser()
    ap.add_argument("-o", default="standalone__glu_gated_swiglu__prompt.s")
    ap.add_argument("opts", nargs="*")
    a = ap.parse_args()
    cfg = Cfg()
    for o in a.opts:
        k, v = o.split("=")
        cur = getattr(cfg, k)
        if isinstance(cur, bool):
            v = v not in ("0", "False", "false")
        elif isinstance(cur, int):
            v = int(v)
        setattr(cfg, k, v)
    open(a.o, "w").write(generate(cfg))


if __name__ == "__main__":
    main()
```

```python
import argparse

KN = "standalone__glu_gated_swiglu__prompt_kernel"
STAMP_OFF = 128 << 20
H_BYTES = 2048 * 1536 * 2
FLAG_OFF = H_BYTES
ZFLAG_OFF = FLAG_OFF + 4096
W2T_OFF = FLAG_OFF + 8192
WS_REC = W2T_OFF + 1966080


class Cfg:
    stamps = False
    A = 7
    Aend = 7
    NWA = 6
    NWB = 5
    rot1 = 1
    rot2 = 0
    rot2mask = 1
    korder = "skip"
    rot2rb = 2
    barA = 9
    map2 = "8x4"
    NH = 8
    tail_ops = 7
    epi_z = "0,0,0,1,2,2"
    pre_z = 10
    post_z = 20
    p_after = 2
    u_pt = 4
    u_zflag = 8
    u_zpoll = 12
    hflags = "sc1"
    oflags = ""
    spin = 60000
    codepf = True
    diag_rt = 0
    diag = ""
    p1stamps = "2,10"


class E:
    def __init__(self, cfg):
        self.L, self.vm, self.lg, self.cfg = [], [], [], cfg
        self.slots = {}

    def __call__(self, s):
        self.L.append("    " + s)

    def label(self, s):
        self.L.append(s + ":")

    def vmem(self, s, tag=None):
        self(s)
        self.vm.append(tag)

    def ds(self, s, tag=None):
        self(s)
        self.lg.append(tag)

    @staticmethod
    def _last(q, pred):
        last = -1
        for i, t in enumerate(q):
            if pred(t):
                last = i
        return last

    def wait(self, vm=None, lg=None):
        parts = []
        if vm is not None:
            last = self._last(self.vm, vm)
            if last >= 0:
                n = len(self.vm) - 1 - last
                if n > 63:
                    n, last = 63, len(self.vm) - 64
                parts.append(f"vmcnt({n})")
                self.vm = self.vm[last + 1:]
        if lg is not None:
            last = self._last(self.lg, lg)
            if last >= 0:
                n = len(self.lg) - 1 - last
                if n > 15:
                    n, last = 15, len(self.lg) - 16
                parts.append(f"lgkmcnt({n})")
                self.lg = self.lg[last + 1:]
        if parts:
            self("s_waitcnt " + " ".join(parts))

    def stamp(self, name, real=False):
        if not self.cfg.stamps:
            return
        if self.cfg.diag and name in ("setup done",):
            return
        if name not in self.slots:
            self.slots[name] = (len(self.slots), real)
        r = S_STAMP + 2 * self.slots[name][0]
        assert r + 1 <= 101, name
        self(f"{'s_memrealtime' if real else 's_memtime'} s[{r}:{r+1}]   ; stamp {name}")


ALL = lambda t: True
def kind(*ks):
    return lambda t: t is not None and t[0] in ks

S_PT0, S_PT1 = 3, 4
S_SPIN = 5
S_ZFLAG = 6
S_X, S_W, S_W2, S_H, S_OUT, S_DBG = 8, 12, 16, 20, 24, 28
S_WV = 32
S_CI, S_PHI = 33, 34
S_XK, S_WK = 35, 36
S_M0X, S_M0W = 37, 38
S_ZK, S_ZEND = 39, 40
S_HS = 41
S_PS, S_PG = 47, 48
S_T = 49
S_NL2E = 58
S_HK = 60
S_XT = 60
S_HSV = 70
S_STAMP = 72
KA = 60

V_LANE = 1
V_XO = 2
V_WO = 8
V_XA = 10
V_WA = 14
V_HST = 17
V_PTS = 18
V_PTA = 19
V_Z = 20
V_HL = 22
V_EXW = 26
V_EXR = 27
V_OW = 29
V_OR = 30
V_OG = 33
V_DBG = 36
V_FLG = 37
V_FLO = 38
V_ZF = 40
V_T = 44
V_FR = 64
V_PT = 144
V_ACC = 160
V_HB = 64
V_A2 = 112

PT_OFF = 131072
EX_OFF = 0
ST_OFF = 61440
OOB = 0x40000000


def srd(e, base, ptr, size):
    e(f"s_mov_b32 s{base}, s{ptr}")
    e(f"s_and_b32 s{base+1}, s{ptr+1}, 0xffff")
    e(f"s_mov_b32 s{base+2}, {size}")
    e(f"s_mov_b32 s{base+3}, 0x20000")


def mod_sub(e, r, n, tmp, times):
    for _ in range(times):
        e(f"s_sub_u32 s{tmp}, s{r}, {n}")
        e(f"s_cmp_ge_u32 s{r}, {n}")
        e(f"s_cselect_b32 s{r}, s{tmp}, s{r}")


def entry(e, cfg):
    T = S_T; L = V_LANE; t = V_T
    e("s_cmp_ge_u32 s2, 256")
    e("s_cbranch_scc1 L_end")
    e(f"s_load_dwordx8 s[{KA}:{KA+7}], s[0:1], 0")
    e(f"s_load_dwordx4 s[{KA+8}:{KA+11}], s[0:1], 32")
    e(f"s_load_dwordx2 s[6:7], s[0:1], 48")
    e.stamp("start rt", real=True)
    e.stamp("start")
    if cfg.codepf:
        e("s_cmp_ge_u32 s2, 16")
        e("s_cbranch_scc1 L_pfskip")
        e(f"s_getpc_b64 s[{T+1}:{T+2}]")
        e.label("L_pfbase")
        e(f"v_min_u32 v{t+8}, (L_end - L_pfbase) / 128, v0")
        e(f"v_lshlrev_b32 v{t+8}, 7, v{t+8}")
        e(f"v_mov_b32 v{t+10}, s{T+2}")
        e(f"v_add_co_u32 v{t+8}, vcc, s{T+1}, v{t+8}")
        e("s_nop 1")
        e(f"v_addc_co_u32 v{t+9}, vcc, 0, v{t+10}, vcc")
        e(f"global_load_dword v{t+19}, v[{t+8}:{t+9}], off")
        e.label("L_pfskip")
    e(f"v_lshrrev_b32 v{t}, 6, v0")
    e(f"v_and_b32 v{L}, 63, v0")
    e(f"v_readfirstlane_b32 s{S_WV}, v{t}")
    e(f"s_and_b32 s{T}, s2, 1")
    e(f"s_bfe_u32 s{T+1}, s2, 0x20001")
    e(f"s_lshr_b32 s{T+2}, s2, 3")
    e(f"v_lshrrev_b32 v{t+3}, 3, v{L}")
    e(f"v_and_b32 v{t+2}, 7, v{L}")
    e(f"s_and_b32 s{T+4}, s{S_WV}, 1")
    e(f"s_lshr_b32 s{T+5}, s{S_WV}, 1")
    e(f"s_cmp_ge_u32 s{T+2}, 30")
    e("s_cbranch_scc1 L_pathB")


def finish_phi(e, cfg):
    mod_sub(e, S_PHI, 10, S_T + 6, 1)
    if cfg.rot1 == 0:
        e(f"s_mov_b32 s{S_PHI}, 0")
    if cfg.rot1 == 2:
        e(f"s_and_b32 s{S_PHI}, s{S_PHI}, 14")
    e(f"s_lshl_b32 s{S_XK}, s{S_PHI}, 7")
    e(f"s_mul_i32 s{S_WK}, s{S_PHI}, 196608")


def x_dma_offsets(e, row0, n):
    T = S_T; L = V_LANE; t = V_T
    e(f"s_lshl_b32 s{T+6}, s{T+4}, 2")
    e(f"v_lshrrev_b32 v{t}, 4, v{L}")
    e(f"v_add_u32 v{t}, s{T+6}, v{t}")
    e(f"v_xor_b32 v{t}, v{t}, v{t+2}")
    e(f"s_lshl_b32 s{T+6}, s{S_WV}, 3"); e(f"s_add_u32 s{T+6}, s{T+6}, s{row0}")
    e(f"v_add_u32 v{t+1}, s{T+6}, v{t+3}")
    e(f"v_mul_u32_u24 v{t+1}, 1280, v{t+1}")
    e(f"v_lshl_add_u32 v{V_XO}, v{t}, 4, v{t+1}")
    for j in range(1, n):
        e(f"v_add_u32 v{V_XO+j}, {40960*j}, v{V_XO}")
    e(f"s_lshl_b32 s{S_M0X}, s{S_WV}, 10")


def first_srds(e, cfg):
    e("s_waitcnt lgkmcnt(0)")
    e(f"s_bitcmp1_b32 s{S_WV}, 0")
    e(f"s_cselect_b32 s{S_W}, s{KA+4}, s{KA+2}")
    e(f"s_cselect_b32 s{S_W+1}, s{KA+5}, s{KA+3}")
    e(f"s_and_b32 s{S_W+1}, s{S_W+1}, 0xffff")
    e(f"s_mov_b32 s{S_W+2}, 1966080")
    e(f"s_mov_b32 s{S_W+3}, 0x20000")
    srd(e, S_X, KA, 2621440)


class PathA:
    name = "A"; XSZ = 24576; XBASE = 0; WBASE = 73728; WSZ = 8192; NXI = 6; NWI = 2

    def __init__(self, cfg):
        self.cfg, self.NX, self.NW = cfg, 3, cfg.NWA
        self.bar_gap = cfg.barA
        assert cfg.barA <= 9
        assert self.WBASE + self.NW * self.WSZ <= PT_OFF

    def early(self, e):
        T = S_T; L = V_LANE; t = V_T
        e(f"s_mul_i32 s{T+3}, s{T+2}, 52"); e(f"s_lshr_b32 s{T+3}, s{T+3}, 8")
        e(f"s_mul_i32 s{T+6}, s{T+3}, 5"); e(f"s_sub_u32 s{T+2}, s{T+2}, s{T+6}")
        e(f"s_add_u32 s{T+6}, s{T+6}, s{T+1}"); e(f"s_mul_i32 s{T+6}, s{T+6}, 86"); e(f"s_lshr_b32 s{T+6}, s{T+6}, 8")
        e(f"s_lshl_b32 s{S_PHI}, s{T+2}, 1"); e(f"s_add_u32 s{S_PHI}, s{S_PHI}, s{T}"); e(f"s_add_u32 s{S_PHI}, s{S_PHI}, s{T+6}")
        e(f"s_mul_i32 s{T+7}, s{T}, 5")
        e(f"s_add_u32 s{T+7}, s{T+7}, s{T+2}")
        e(f"s_mul_i32 s{S_CI}, s{T+1}, 6"); e(f"s_add_u32 s{S_CI}, s{S_CI}, s{T+3}")
        finish_phi(e, self.cfg)
        e(f"s_lshl_b32 s{T+6}, s{T+5}, 4")
        e(f"v_add_u32 v{t}, s{T+6}, v{t+3}")
        e(f"v_mul_u32_u24 v{t}, 3072, v{t}")
        e(f"v_bfe_u32 v{t+1}, v{L}, 4, 1")
        e(f"v_lshlrev_b32 v{t+1}, 1, v{t+1}")
        e(f"v_xor_b32 v{t+1}, v{t+1}, v{t+2}")
        e(f"s_lshl_b32 s{T+6}, s{S_CI}, 7")
        e(f"v_lshl_add_u32 v{t}, v{t+1}, 4, v{t}")
        e(f"v_add_u32 v{V_WO}, s{T+6}, v{t}")
        e(f"v_xor_b32 v{V_WO+1}, 64, v{V_WO}")
        e(f"v_add_u32 v{V_WO+1}, {8*3072}, v{V_WO+1}")
        e(f"s_mul_i32 s{T+8}, s{T+7}, 192")
        x_dma_offsets(e, T + 8, 6)
        e(f"s_lshl_b32 s{S_M0W}, s{T+4}, 12"); e(f"s_lshl_b32 s{T+6}, s{T+5}, 11"); e(f"s_add_u32 s{S_M0W}, s{S_M0W}, s{T+6}")

    def late(self, e):
        T = S_T; L = V_LANE; t = V_T
        e(f"s_and_b32 s{T}, s{S_WV}, 1")
        e(f"s_lshr_b32 s{T+1}, s{S_WV}, 1")
        e(f"v_and_b32 v{t}, 15, v{L}")
        e(f"s_mul_i32 s{T+2}, s{T+1}, 96")
        e(f"v_add_u32 v{t}, s{T+2}, v{t}")
        e(f"v_lshlrev_b32 v{t}, 7, v{t}")
        e(f"v_bfe_u32 v{t+1}, v{L}, 1, 3")
        e(f"v_lshrrev_b32 v{t+2}, 4, v{L}")
        e(f"v_xor_b32 v{t+1}, v{t+1}, v{t+2}")
        e(f"v_lshl_add_u32 v{V_XA}, v{t+1}, 4, v{t}")
        e(f"v_xor_b32 v{V_XA+1}, 64, v{V_XA}")
        e(f"v_bfe_u32 v{t+3}, v{L}, 2, 2")
        e(f"v_lshl_add_u32 v{t}, v{t+2}, 3, v{t+3}")
        e(f"v_lshlrev_b32 v{t}, 7, v{t}")
        e(f"v_and_b32 v{t+4}, 3, v{L}")
        e(f"v_lshl_add_u32 v{t}, v{t+4}, 3, v{t}")
        e(f"v_bfe_u32 v{t+4}, v{L}, 3, 2")
        e(f"s_lshl_b32 s{T+2}, s{T}, 1")
        e(f"v_xor_b32 v{t+4}, s{T+2}, v{t+4}")
        e(f"v_lshl_add_u32 v{t}, v{t+4}, 5, v{t}")
        e(f"v_add_u32 v{V_WA}, {self.WBASE}, v{t}")
        e(f"v_xor_b32 v{V_WA+1}, 32, v{V_WA}")
        e(f"v_lshlrev_b32 v{V_HST}, 4, v{L}")
        e(f"s_lshl_b32 s{T+2}, s{S_CI}, 1"); e(f"s_add_u32 s{T+2}, s{T+2}, s{T}"); e(f"s_lshl_b32 s{T+2}, s{T+2}, 12")
        e(f"s_lshl_b32 s{T+3}, s{T+7}, 1"); e(f"s_add_u32 s{T+3}, s{T+3}, s{T+1}"); e(f"s_mul_i32 s{T+3}, s{T+3}, 6")
        for tb in range(6):
            e(f"s_add_u32 s{T+4}, s{T+3}, {tb}")
            e(f"s_lshr_b32 s{T+5}, s{T+4}, 2"); e(f"s_mul_i32 s{T+5}, s{T+5}, 196608")
            e(f"s_and_b32 s{T+4}, s{T+4}, 3"); e(f"s_lshl_b32 s{T+4}, s{T+4}, 10")
            e(f"s_add_u32 s{T+4}, s{T+4}, s{T+5}"); e(f"s_add_u32 s{S_HS+tb}, s{T+4}, s{T+2}")
        e(f"s_mul_i32 s{T+2}, s{T+7}, 384"); e(f"s_lshl_b32 s{T+3}, s{S_CI}, 2"); e(f"s_add_u32 s{T+2}, s{T+2}, s{T+3}")
        e(f"s_add_u32 s{T+2}, s{T+2}, {FLAG_OFF}")
        e(f"v_min_u32 v{t}, 2, v{L}")
        e(f"v_lshlrev_b32 v{t}, 7, v{t}")
        e(f"v_add_u32 v{V_FLO}, s{T+2}, v{t}")

    def w_op(self, u, p):
        pre = [f"s_add_u32 m0, s{S_M0W}, {self.WBASE + (u % self.NW) * self.WSZ + p * 1024}"]
        return pre, f"buffer_load_dwordx4 v{V_WO+p}, s[{S_W}:{S_W+3}], s{S_WK} offen lds"

    def reads(self, n):
        st = V_FR + 40 * (n & 1)
        xs, ws = (n // 2) % self.NX, n % self.NW
        def x(tb):
            r = st + 16 + 4 * tb
            return (("x", n, tb), f"ds_read_b128 v[{r}:{r+3}], v{V_XA + (n & 1)} offset:{xs*self.XSZ + tb*2048}")
        def w(k, jj):
            m, fb = divmod(k, 2)
            r = st + 4 * k + 2 * jj
            return (("w", n, k), f"ds_read_b64_tr_b16 v[{r}:{r+1}], v{V_WA+fb} offset:{ws*self.WSZ + m*4096 + jj*512}")
        return [x(0), w(0, 0), w(0, 1), w(1, 0), w(1, 1), w(2, 0), w(2, 1), w(3, 0), w(3, 1), x(1), x(2), x(3), x(4), x(5)]

    def mfmas(self, n):
        st = V_FR + 40 * (n & 1)
        out = []
        for tb in range(6):
            for k in range(4):
                a = V_ACC + 16 * tb + 4 * k
                c = "0" if n == 0 else f"v[{a}:{a+3}]"
                out.append(([("x", n, tb), ("w", n, k)],
                            f"v_mfma_f32_16x16x32_bf16 v[{a}:{a+3}], v[{st+4*k}:{st+4*k+3}], v[{st+16+4*tb}:{st+16+4*tb+3}], {c}"))
        return out

    def read_plan(self, n):
        r = self.reads(n + 1) if n < 19 else []
        return {g + 1 + self.bar_gap: [x] for g, x in enumerate(r)}

    dma_gaps = [2, 6, 11, 15, 19, 4, 13, 17, 21, 0]
    side_gaps = (1, 3, 5, 7)


class PathB:
    name = "B"; XSZ = 16384; XBASE = 0; WBASE = 49152; WSZ = 12288; NXI = 4; NWI = 3
    order = [(0, 0), (1, 0), (0, 1), (1, 1), (2, 0), (2, 1)]

    def __init__(self, cfg):
        self.cfg, self.NX, self.NW = cfg, 3, cfg.NWB
        assert self.WBASE + self.NW * self.WSZ <= PT_OFF

    def early(self, e):
        T = S_T; L = V_LANE; t = V_T
        e(f"s_lshl_b32 s{S_CI}, s{T+1}, 1"); e(f"s_add_u32 s{S_CI}, s{S_CI}, s{T}"); e(f"s_lshl_b32 s{S_CI}, s{S_CI}, 1")
        e(f"s_add_u32 s{S_CI}, s{S_CI}, s{T+2}"); e(f"s_sub_u32 s{S_CI}, s{S_CI}, 30")
        e(f"s_mul_i32 s{S_PHI}, s{S_CI}, 5"); e(f"s_lshr_b32 s{S_PHI}, s{S_PHI}, 3")
        finish_phi(e, self.cfg)
        e(f"v_lshrrev_b32 v{t}, 2, v{L}")
        e(f"s_lshl_b32 s{T+6}, s{T+5}, 4")
        e(f"v_add_u32 v{t}, s{T+6}, v{t}")
        e(f"v_mul_u32_u24 v{t}, 3072, v{t}")
        e(f"v_and_b32 v{t+1}, 3, v{L}")
        e(f"v_xor_b32 v{t+1}, s{T+4}, v{t+1}")
        e(f"v_lshl_add_u32 v{t}, v{t+1}, 4, v{t}")
        e(f"s_mul_i32 s{T+6}, s{S_CI}, 192")
        e(f"v_add_u32 v{V_WO}, s{T+6}, v{t}")
        e(f"s_mov_b32 s{T+8}, 1920")
        x_dma_offsets(e, T + 8, 4)
        e(f"s_mul_i32 s{S_M0W}, s{T+4}, 6144"); e(f"s_lshl_b32 s{T+6}, s{T+5}, 10"); e(f"s_add_u32 s{S_M0W}, s{S_M0W}, s{T+6}")

    def late(self, e):
        T = S_T; L = V_LANE; t = V_T
        e(f"s_and_b32 s{T}, s{S_WV}, 1")
        e(f"s_lshr_b32 s{T+1}, s{S_WV}, 1")
        e(f"v_and_b32 v{t}, 31, v{L}")
        e(f"s_lshl_b32 s{T+2}, s{T+1}, 6")
        e(f"v_add_u32 v{t}, s{T+2}, v{t}")
        e(f"v_lshlrev_b32 v{t}, 7, v{t}")
        e(f"v_bfe_u32 v{t+1}, v{L}, 1, 3")
        e(f"v_lshrrev_b32 v{t+2}, 5, v{L}")
        e(f"v_xor_b32 v{t+1}, v{t+1}, v{t+2}")
        for s4 in range(4):
            e(f"v_xor_b32 v{t+3}, {2*s4}, v{t+1}")
            e(f"v_lshl_add_u32 v{V_XA+s4}, v{t+3}, 4, v{t}")
        e(f"v_bfe_u32 v{t}, v{L}, 4, 1")
        e(f"v_mul_u32_u24 v{t+1}, 6144, v{t}")
        e(f"v_lshl_add_u32 v{t+1}, v{t+2}, 9, v{t+1}")
        e(f"v_bfe_u32 v{t+4}, v{L}, 2, 2")
        e(f"v_lshl_add_u32 v{t+1}, v{t+4}, 6, v{t+1}")
        e(f"v_and_b32 v{t+4}, 1, v{L}")
        e(f"v_lshl_add_u32 v{t+1}, v{t+4}, 3, v{t+1}")
        e(f"v_bfe_u32 v{t+4}, v{L}, 1, 1")
        e(f"v_lshl_add_u32 v{t+1}, v{t+4}, 5, v{t+1}")
        e(f"s_mul_i32 s{T+2}, s{T}, 3")
        e(f"s_mul_i32 s{T+5}, s{S_CI}, 12288")
        e(f"s_add_u32 s{T+6}, s{T+1}, 30"); e(f"s_mul_i32 s{T+6}, s{T+6}, 196608"); e(f"s_add_u32 s{T+5}, s{T+5}, s{T+6}")
        for j in range(3):
            e(f"s_add_u32 s{T+3}, s{T+2}, {j}")
            e(f"s_and_b32 s{T+4}, s{T+3}, 1")
            e(f"s_lshr_b32 s{T+3}, s{T+3}, 1")
            e(f"v_xor_b32 v{t+3}, s{T+4}, v{t}")
            e(f"v_lshl_add_u32 v{t+3}, v{t+3}, 4, v{t+1}")
            e(f"s_lshl_b32 s{T+7}, s{T+3}, 11"); e(f"s_add_u32 s{T+7}, s{T+7}, {self.WBASE}")
            e(f"v_add_u32 v{V_WA+j}, s{T+7}, v{t+3}")
            e(f"s_lshl_b32 s{T+3}, s{T+3}, 12"); e(f"s_lshl_b32 s{T+4}, s{T+4}, 9")
            e(f"s_add_u32 s{T+3}, s{T+3}, s{T+4}"); e(f"s_add_u32 s{T+3}, s{T+3}, s{T+5}")
            for n, (jn, tb) in enumerate(self.order):
                if jn == j:
                    e(f"s_add_u32 s{S_HS+n}, s{T+3}, {tb*2048}")
        e(f"v_lshlrev_b32 v{t+1}, 10, v{t}")
        e(f"v_lshl_add_u32 v{t+1}, v{t+2}, 8, v{t+1}")
        e(f"v_and_b32 v{t+3}, 15, v{L}")
        e(f"v_lshl_add_u32 v{V_HST}, v{t+3}, 4, v{t+1}")
        e(f"s_lshl_b32 s{T+2}, s{S_CI}, 2"); e(f"s_add_u32 s{T+2}, s{T+2}, {FLAG_OFF + 30*128}")
        e(f"s_cmp_lt_u32 s{S_CI}, 8"); e(f"s_cselect_b32 s{T+3}, 32, 0")
        e(f"v_and_b32 v{t}, 1, v{L}"); e(f"v_lshlrev_b32 v{t}, 7, v{t}")
        e(f"v_and_b32 v{t+1}, 2, v{L}"); e(f"v_mul_u32_u24 v{t+1}, s{T+3}, v{t+1}")
        e(f"v_add3_u32 v{V_FLO}, v{t}, v{t+1}, s{T+2}")

    def w_op(self, u, p):
        pre = [f"s_add_u32 m0, s{S_M0W}, {self.WBASE + (u % self.NW) * self.WSZ + p * 2048 - p * 64}"]
        off = f" offset:{64*p}" if p else ""
        return pre, f"buffer_load_dwordx4 v{V_WO}, s[{S_W}:{S_W+3}], s{S_WK} offen{off} lds"

    def reads16(self, s):
        st = V_FR + 20 * (s & 1)
        xs, ws = (s // 4) % self.NX, (s // 2) % self.NW
        def x(tb):
            return (("x", s, tb), f"ds_read_b128 v[{st+4*tb}:{st+4*tb+3}], v{V_XA + s % 4} offset:{xs*self.XSZ + tb*4096}")
        def w(j, jj):
            r = st + 8 + 4 * j + 2 * jj
            return (("w", s, j), f"ds_read_b64_tr_b16 v[{r}:{r+1}], v{V_WA+j} offset:{ws*self.WSZ + (s&1)*1024 + jj*256}")
        return [x(0), w(0, 0), w(0, 1), w(1, 0), w(1, 1), x(1), w(2, 0), w(2, 1)]

    def reads(self, n):
        return self.reads16(2 * n)

    def mfmas(self, n):
        out = []
        for s in (2 * n, 2 * n + 1):
            st = V_FR + 20 * (s & 1)
            for i, (j, tb) in enumerate(self.order):
                a = V_ACC + 16 * i
                c = "0" if s == 0 else f"v[{a}:{a+15}]"
                out.append(([("x", s, tb), ("w", s, j)],
                            f"v_mfma_f32_32x32x16_bf16 v[{a}:{a+15}], v[{st+8+4*j}:{st+8+4*j+3}], v[{st+4*tb}:{st+4*tb+3}], {c}"))
        return out

    def read_plan(self, n):
        plan = {}
        for half, s in ((0, 2 * n + 1), (6, 2 * n + 2)):
            r = self.reads16(s) if s < 40 else []
            for i in range(len(r) // 2):
                plan[half + i] = r[2 * i:2 * i + 2]
        return plan

    dma_gaps = [7, 9, 1, 3, 10, 4, 8, 2]
    side_gaps = (4, 5, 10, 11)
    bar_gap = 6


def setup_common_late(e, cfg):
    T = S_T; L = V_LANE; t = V_T
    srd(e, S_W2, KA + 6, 1966080)
    srd(e, S_OUT, KA + 8, 2621440)
    srd(e, S_DBG, KA + 10, 256)
    e(f"s_mov_b32 s{T+2}, s2")
    mod_sub(e, T + 2, 240, T + 3, 1)
    e(f"s_mul_i32 s{S_PS}, s{T+2}, 205"); e(f"s_lshr_b32 s{S_PS}, s{S_PS}, 10")
    e(f"s_mul_i32 s{T+3}, s{S_PS}, 5"); e(f"s_sub_u32 s{S_PG}, s{T+2}, s{T+3}")
    e(f"s_mul_i32 s{S_PT0}, s{S_PS}, 40960"); e(f"s_lshl_b32 s{T+3}, s{S_PG}, 8"); e(f"s_add_u32 s{S_PT0}, s{S_PT0}, s{T+3}")
    e(f"s_mul_i32 s{T+3}, s{S_WV}, 10240"); e(f"s_add_u32 s{S_PT0}, s{S_PT0}, s{T+3}")
    e(f"s_add_u32 s{S_PT1}, s{S_PT0}, 5120")
    e(f"v_lshrrev_b32 v{t+2}, 4, v{L}")
    e(f"v_and_b32 v{t+6}, 15, v{L}")
    e(f"v_mul_u32_u24 v{t}, 1280, v{t+2}")
    e(f"v_lshl_add_u32 v{V_PTS}, v{t+6}, 4, v{t}")
    e(f"v_lshrrev_b32 v{t}, 2, v{L}"); e(f"v_lshlrev_b32 v{t}, 8, v{t}")
    e(f"v_and_b32 v{t+1}, 3, v{L}"); e(f"v_lshl_add_u32 v{t}, v{t+1}, 3, v{t}")
    e(f"s_lshl_b32 s{T+2}, s{S_WV}, 6"); e(f"s_add_u32 s{T+2}, s{T+2}, {PT_OFF}")
    e(f"v_add_u32 v{V_PTA}, s{T+2}, v{t}")
    e(f"s_lshl_b32 s{T+2}, s{S_PG}, 2"); e(f"s_add_u32 s{T+2}, s{T+2}, s{S_WV}"); e(f"s_lshl_b32 s{T+2}, s{T+2}, 1")
    e(f"s_mul_i32 s{T+3}, s{S_PS}, 5120"); e(f"s_add_u32 s{T+3}, s{T+3}, {W2T_OFF}")
    for c in range(2):
        e(f"s_add_u32 s{T+4}, s{T+2}, {c}")
        e(f"s_mul_i32 s{T+5}, s{T+4}, 52"); e(f"s_lshr_b32 s{T+5}, s{T+5}, 8"); e(f"s_mul_i32 s{T+5}, s{T+5}, {245760-5120}")
        e(f"s_lshl_b32 s{T+4}, s{T+4}, 10"); e(f"s_add_u32 s{T+4}, s{T+4}, s{T+5}"); e(f"s_add_u32 s{S_PS+c}, s{T+4}, s{T+3}")
    e(f"s_mov_b32 s{S_XT}, s{S_XK}")
    for k in range(1, 10):
        if cfg.korder == "skip":
            e(f"s_cmp_gt_u32 s{S_XK}, {128*(k-1)}")
            e(f"s_cselect_b32 s{S_XT+k}, {128*(k-1)}, {128*k}" if k == 1 else f"s_cselect_b32 s{S_XT+k}, s{T+8}, s{T+7}")
            e(f"s_mov_b32 s{T+8}, {128*k}"); e(f"s_mov_b32 s{T+7}, {128*(k+1)}")
        else:
            e(f"s_add_u32 s{S_XT+k}, s{S_XT+k-1}, 128"); e(f"s_cmp_eq_u32 s{S_XT+k}, 1280"); e(f"s_cselect_b32 s{S_XT+k}, 0, s{S_XT+k}")
    e(f"s_lshl_b32 s{S_ZFLAG}, s2, 2"); e(f"s_add_u32 s{S_ZFLAG}, s{S_ZFLAG}, {ZFLAG_OFF}")
    e(f"s_mov_b32 s{S_NL2E}, 0xbfb8aa3b"); e(f"s_mov_b32 s{S_NL2E+1}, 0xbfb8aa3b")
    RB, NJ = T + 7, T + 8
    e(f"s_and_b32 s{T}, s2, 7"); e(f"s_lshr_b32 s{T+1}, s2, 3")
    if cfg.map2 == "4x8":
        e(f"s_lshl_b32 s{RB}, s{T}, 2"); e(f"s_lshr_b32 s{T+2}, s{T+1}, 3"); e(f"s_add_u32 s{RB}, s{RB}, s{T+2}")
        e(f"s_and_b32 s{NJ}, s{T+1}, 7")
        e(f"s_mul_i32 s{T+2}, s{T+2}, 3")
        if cfg.rot2rb == 2:
            e(f"s_bfe_u32 s{T+2}, s{T+1}, 0x10003"); e(f"s_mul_i32 s{T+2}, s{T+2}, 6")
    else:
        e(f"s_lshr_b32 s{RB}, s{T}, 1"); e(f"s_lshl_b32 s{RB}, s{RB}, 3"); e(f"s_lshr_b32 s{T+2}, s{T+1}, 2"); e(f"s_add_u32 s{RB}, s{RB}, s{T+2}")
        e(f"s_and_b32 s{NJ}, s{T}, 1"); e(f"s_lshl_b32 s{NJ}, s{NJ}, 2"); e(f"s_and_b32 s{T+3}, s{T+1}, 3"); e(f"s_add_u32 s{NJ}, s{NJ}, s{T+3}")
        e(f"s_mul_i32 s{T+2}, s{T+2}, 3"); e(f"s_lshr_b32 s{T+2}, s{T+2}, 1")
        if cfg.rot2rb == 2:
            e(f"s_bfe_u32 s{T+2}, s{T+1}, 0x10002"); e(f"s_mul_i32 s{T+2}, s{T+2}, 6")
    e(f"s_and_b32 s{T+3}, s{NJ}, {cfg.rot2mask}"); e(f"s_mul_i32 s{T+3}, s{T+3}, {cfg.rot2}")
    if cfg.rot2rb:
        e(f"s_add_u32 s{T+3}, s{T+3}, s{T+2}")
    mod_sub(e, T + 3, 12, T + 2, 1)
    e(f"s_mul_i32 s{T+4}, s{S_WV}, 12")
    e(f"s_mul_i32 s{T+5}, s{NJ}, 48"); e(f"s_add_u32 s{T+5}, s{T+5}, s{T+4}")
    e(f"s_mul_i32 s{S_ZEND}, s{T+5}, 5120"); e(f"s_add_u32 s{S_ZEND}, s{S_ZEND}, {W2T_OFF}")
    e(f"s_mul_i32 s{T+6}, s{T+3}, 5120"); e(f"s_add_u32 s{S_ZK}, s{S_ZEND}, s{T+6}")
    e(f"s_add_u32 s{S_ZEND}, s{S_ZEND}, 61440")
    e(f"s_mul_i32 s{T+5}, s{RB}, 48"); e(f"s_add_u32 s{T+5}, s{T+5}, s{T+4}"); e(f"s_lshl_b32 s{T+5}, s{T+5}, 12")
    e(f"s_mov_b32 s{S_CI}, s{T+5}")
    e(f"s_lshl_b32 s{T+3}, s{T+3}, 12"); e(f"s_add_u32 s{S_HSV}, s{T+5}, s{T+3}")
    e(f"v_lshlrev_b32 v{V_Z}, 4, v{L}")
    e(f"v_add_u32 v{V_Z+1}, 4096, v{V_Z}")
    for ps in range(4):
        e(f"s_add_u32 s{T+2}, s{S_WV}, {ps+1}"); e(f"s_and_b32 s{T+2}, s{T+2}, 3"); e(f"s_lshl_b32 s{T+2}, s{T+2}, 10")
        e(f"v_add_u32 v{V_HL+ps}, s{T+2}, v{V_Z}")
    e(f"s_mul_i32 s{T+2}, s{S_WV}, 5120"); e(f"v_add_u32 v{V_EXW}, s{T+2}, v{V_Z}")
    e(f"s_xor_b32 s{T+2}, s{S_WV}, 2"); e(f"s_mul_i32 s{T+2}, s{T+2}, 5120"); e(f"v_add_u32 v{V_EXR}, s{T+2}, v{V_Z}")
    e(f"s_add_u32 s{T+2}, s{S_WV}, 1"); e(f"s_and_b32 s{T+2}, s{T+2}, 3"); e(f"s_mul_i32 s{T+2}, s{T+2}, 5120")
    e(f"v_add_u32 v{V_EXR+1}, s{T+2}, v{V_Z}")
    e(f"s_mul_i32 s{T+6}, s{S_WV}, 2816"); e(f"s_add_u32 s{T+6}, s{T+6}, {ST_OFF}")
    e(f"v_mul_u32_u24 v{t}, 176, v{t+6}")
    e(f"v_lshl_add_u32 v{t}, v{t+2}, 3, v{t}"); e(f"v_add_u32 v{V_OW}, s{T+6}, v{t}")
    e(f"s_lshl_b32 s{T+4}, s{RB}, 2"); e(f"s_add_u32 s{T+4}, s{T+4}, s{S_WV}"); e(f"s_mul_i32 s{T+4}, s{T+4}, 20480")
    e(f"s_mul_i32 s{T+5}, s{NJ}, 160"); e(f"s_add_u32 s{T+4}, s{T+4}, s{T+5}")
    for k in range(3):
        e(f"v_add_u32 v{t}, {64*k}, v{L}")
        e(f"v_mul_u32_u24 v{t+1}, 205, v{t}"); e(f"v_lshrrev_b32 v{t+1}, 11, v{t+1}")
        e(f"v_mul_u32_u24 v{t+3}, 10, v{t+1}"); e(f"v_sub_u32 v{t+3}, v{t}, v{t+3}"); e(f"v_lshlrev_b32 v{t+3}, 4, v{t+3}")
        e(f"v_mul_u32_u24 v{t+4}, 176, v{t+1}"); e(f"v_add3_u32 v{V_OR+k}, v{t+4}, v{t+3}, s{T+6}")
        e(f"v_mul_u32_u24 v{t+4}, 1280, v{t+1}"); e(f"v_add3_u32 v{V_OG+k}, v{t+4}, v{t+3}, s{T+4}")
    e(f"v_lshrrev_b32 v{t}, 5, v{L}"); e(f"v_lshlrev_b32 v{t}, 30, v{t}")
    e(f"v_add_u32 v{V_OG+2}, v{V_OG+2}, v{t}")
    e(f"s_lshl_b32 s{T+4}, s{RB}, 7"); e(f"s_add_u32 s{T+4}, s{T+4}, {FLAG_OFF}")
    e(f"v_min_u32 v{t}, 23, v{L}"); e(f"v_lshlrev_b32 v{t}, 2, v{t}"); e(f"v_add_u32 v{V_FLG}, s{T+4}, v{t}")


Z_OPS = [("Z", i, u) for i in range(12) for u in range(5)]


def op_parts(op, P):
    k, u, p = op
    pre = []
    if k == "X":
        pre += [f"s_add_u32 m0, s{S_M0X}, {P.XBASE + (u % P.NX) * P.XSZ + p * 4096}"]
        return pre, f"buffer_load_dwordx4 v{V_XO+p}, s[{S_X}:{S_X+3}], s{S_XT+u if u else S_XK} offen lds"
    if k == "W":
        if p == 0 and u > 0:
            pre += [f"s_add_u32 s{S_WK}, s{S_WK}, 98304" if u & 1 else f"s_mul_i32 s{S_WK}, s{S_XT + u//2}, 1536"]
        a, b = P.w_op(u, p)
        return pre + a, b
    if k == "P":
        pre += [f"s_lshl_b32 m0, s{S_M0X}, 1", f"s_add_u32 m0, m0, {PT_OFF + p * 1024}"]
        return pre, f"buffer_load_dwordx4 v{V_PTS}, s[{S_W2}:{S_W2+3}], s{S_PT0+p} offen nt lds"
    if k == "Z":
        if p == 0 and u > 0:
            pre += [f"s_add_u32 s{S_ZK}, s{S_ZK}, 5120", f"s_sub_u32 s{S_T}, s{S_ZK}, 61440",
                    f"s_cmp_eq_u32 s{S_ZK}, s{S_ZEND}", f"s_cselect_b32 s{S_ZK}, s{S_T}, s{S_ZK}"]
        r = 20 * u + 4 * p
        off = f" offset:{1024*p}" if 0 < p < 4 else ""
        return pre, f"buffer_load_dwordx4 a[{r}:{r+3}], v{V_Z + (p == 4)}, s[{S_H}:{S_H+3}], s{S_ZK} offen{off} sc1"
    raise ValueError(op)


class Q:
    def __init__(self, e, ops, P=None):
        self.e, self.ops, self.i, self.armed, self.P = e, list(ops), 0, None, P

    def left(self):
        return len(self.ops) - self.i

    def arm(self):
        pre, ins = op_parts(self.ops[self.i], self.P)
        for s in pre:
            self.e(s)
        self.armed = ins

    def fire(self):
        if "nodma" in self.e.cfg.diag and self.ops[self.i][0] in "XW" and self.i > 16:
            self.armed = "s_nop 0"
        self.e.vmem(self.armed, self.ops[self.i])
        self.armed = None
        self.i += 1

    def issue(self, n=1):
        for _ in range(n):
            if not self.left():
                return
            if self.armed is None:
                self.arm()
            if self.armed.endswith("lds"):
                self.e("s_nop 0")
            self.fire()


def spin_dbg(e, cfg, sfx):
    e(f"v_cmp_eq_u32 vcc, 1, v{V_DBG}")
    e("s_nop 1")
    e(f"s_cbranch_vccnz L_dbg_ok{sfx}")
    e(f"s_mov_b32 s{S_SPIN}, {cfg.spin}")
    e.label(f"L_dbg_spin{sfx}")
    e(f"v_mov_b32 v{V_DBG}, 0")
    e("s_sleep 2")
    e(f"buffer_load_dword v{V_DBG}, v{V_DBG}, s[{S_DBG}:{S_DBG+3}], 0 offen sc1")
    e("s_waitcnt vmcnt(0)")
    e(f"v_cmp_eq_u32 vcc, 1, v{V_DBG}")
    e("s_nop 1")
    e(f"s_cbranch_vccnz L_dbg_ok{sfx}")
    e(f"s_sub_u32 s{S_SPIN}, s{S_SPIN}, 1")
    e(f"s_cmp_lg_u32 s{S_SPIN}, 0")
    e(f"s_cbranch_scc1 L_dbg_spin{sfx}")
    e.label(f"L_dbg_ok{sfx}")


def zflag_load():
    return f"buffer_load_dwordx4 v[{V_ZF}:{V_ZF+3}], v{V_Z}, s[{S_H}:{S_H+3}], s{S_T+1} offen sc1"


def check_zflags(e, cfg, sfx):
    def test():
        e(f"v_and_b32 v{V_ZF}, v{V_ZF}, v{V_ZF+1}")
        e(f"v_and_b32 v{V_ZF+2}, v{V_ZF+2}, v{V_ZF+3}")
        e(f"v_and_b32 v{V_ZF}, v{V_ZF}, v{V_ZF+2}")
        e(f"v_cmp_ne_u32 vcc, 1, v{V_ZF}")
        e("s_nop 1")
        e(f"s_cbranch_vccz L_zf_ok{sfx}")
    test()
    e(f"s_mov_b32 s{S_SPIN}, {cfg.spin}")
    e.label(f"L_zf_spin{sfx}")
    e("s_sleep 2")
    e(zflag_load())
    e("s_waitcnt vmcnt(0)")
    test()
    e(f"s_sub_u32 s{S_SPIN}, s{S_SPIN}, 1")
    e(f"s_cmp_lg_u32 s{S_SPIN}, 0")
    e(f"s_cbranch_scc1 L_zf_spin{sfx}")
    e.label(f"L_zf_ok{sfx}")


def store_one(e, srd_, voff, soff, mask):
    e(f"v_mov_b32 v{V_T+16}, 1")
    if voff is None:
        voff = V_T + 17
        e(f"v_mov_b32 v{voff}, 0")
    e(f"s_mov_b64 exec, {mask}")
    e(f"buffer_store_dword v{V_T+16}, v{voff}, s[{srd_}:{srd_+3}], {soff} offen sc1")
    e("s_mov_b64 exec, -1")


def phase1(e, cfg, P):
    sfx = P.name
    hx = P.NXI // 2
    W = lambda n: [("W", n, p) for p in range(P.NWI)]
    xo = [0, 3, 1, 4, 2, 5] if P.NXI == 6 else [0, 2, 1, 3]
    stream = W(0) + [("X", 0, j) for j in xo] + W(1) + [("X", 1, j) for j in xo]
    for n in range(2, 20):
        kb = (n + 1) // 2
        if n % 2 == 1 and kb < 10:
            stream += [("X", kb, j) for j in range(hx)]
        stream += W(n)
        if n == cfg.p_after:
            stream += [("P", 0, 0), ("P", 0, 1)]
        if n % 2 == 1 and kb < 10:
            stream += [("X", kb, j) for j in range(hx, P.NXI)]
    stream += Z_OPS[:cfg.tail_ops]
    q = Q(e, stream, P)

    def needed(n):
        return max(i for i, (k, u, p) in enumerate(stream) if (k == "X" and u == n // 2) or (k == "W" and u == n)) + 1

    def ahead(n):
        return cfg.A + (cfg.Aend - cfg.A) * max(n - 3, 0) // 14 if n < 17 else cfg.Aend

    def fits(i, freed):
        k, u, p = stream[i]
        if k == "X":
            return u < P.NX or (u - P.NX) * 2 + 2 <= freed
        if k == "W":
            return u < P.NW or (u - P.NW) + 1 <= freed
        return True

    def is_needed(n):
        ops = set(stream[:needed(n)])
        return lambda t: t in ops

    P.early(e)
    first_srds(e, cfg)
    q.issue(needed(0))
    srd(e, S_H, 6, (STAMP_OFF + (1 << 20)) if cfg.stamps else WS_REC)
    if P.name == "A":
        e(f"s_or_b32 s{S_T}, s2, s{S_WV}")
        e("s_cbranch_scc1 L_noclear")
        for k in range(4):
            e(f"v_mov_b32 v{V_T+4+k}, 0")
        e(f"v_lshlrev_b32 v{V_T+8}, 4, v{V_LANE}")
        e(f"s_mov_b32 s{S_T}, {FLAG_OFF}"); e(f"s_mov_b32 s{S_T+1}, {ZFLAG_OFF}")
        for k in range(4):
            e(f"buffer_store_dwordx4 v[{V_T+4}:{V_T+7}], v{V_T+8}, s[{S_H}:{S_H+3}], s{S_T} offen offset:{1024*k} sc1")
        e(f"buffer_store_dwordx4 v[{V_T+4}:{V_T+7}], v{V_T+8}, s[{S_H}:{S_H+3}], s{S_T+1} offen sc1")
        e("s_nop 1")
        e.label("L_noclear")
    P.late(e)
    setup_common_late(e, cfg)
    e.stamp("setup done")
    q.issue(cfg.A)
    e.wait(vm=is_needed(0))
    if P.name == "A":
        e(f"s_or_b32 s{S_T}, s2, s{S_WV}")
        e("s_cbranch_scc1 L_noclear2")
        store_one(e, S_DBG, None, "0", "1")
        e.label("L_noclear2")
    e.stamp("first data")
    e("s_barrier")
    for tag, txt in P.reads(0):
        e.ds(txt, tag)
    zok = "noside" in cfg.diag
    freed = 0
    for n in range(20):
        plan = P.read_plan(n)
        mf = P.mfmas(n)
        sg = P.side_gaps if "noside" not in cfg.diag else (99, 99, 99, 99)
        for g, (need, txt) in enumerate(mf):
            if g == P.bar_gap:
                if n < 19:
                    tgt = min(needed(n + 1), len(stream))
                    while q.armed is not None or q.i < tgt:
                        assert fits(q.i, freed)
                        q.issue()
                e.wait(lg=ALL)
            else:
                e.wait(lg=lambda t: t in need)
            e(txt)
            if g == P.bar_gap:
                if n < 19:
                    nd = is_needed(n + 1)
                    if n == cfg.u_zflag:
                        e.wait(vm=lambda t: nd(t) or kind("pts", "dbg")(t))
                    elif n == cfg.u_pt - 1:
                        e.wait(vm=lambda t: nd(t) or kind("P")(t))
                    else:
                        e.wait(vm=nd)
                e("s_barrier")
                freed = n + 1
                if str(n) in cfg.p1stamps.split(","):
                    e.stamp(f"p1 unit {n}")
            if q.armed is not None:
                q.fire()
            for tag, rd in plan.get(g, []):
                e.ds(rd, tag)
            if n == cfg.u_pt and g in sg[:2]:
                c2 = sg.index(g)
                for jj in range(2):
                    r = V_PT + 4 * c2 + 2 * jj
                    e.ds(f"ds_read_b64_tr_b16 v[{r}:{r+1}], v{V_PTA} offset:{jj*4096 + c2*32}", ("pt", c2))
            elif n == cfg.u_pt + 1 and g in sg[:2]:
                c2 = sg.index(g)
                e.wait(lg=lambda t: t == ("pt", c2))
                e.vmem(f"buffer_store_dwordx4 v[{V_PT+4*c2}:{V_PT+4*c2+3}], v{V_Z}, s[{S_H}:{S_H+3}], s{S_PS+c2} offen sc1", ("pts",))
            elif n == cfg.u_pt + 1 and g == sg[2]:
                e(f"v_mov_b32 v{V_DBG}, 0")
            elif n == cfg.u_pt + 1 and g == sg[3]:
                e.vmem(f"buffer_load_dword v{V_DBG}, v{V_DBG}, s[{S_DBG}:{S_DBG+3}], 0 offen sc1", ("dbg",))
            elif n == cfg.u_zflag + (sg[2] < P.bar_gap) and g == sg[2]:
                spin_dbg(e, cfg, sfx)
                e(f"s_cmp_lg_u32 s{S_WV}, 0")
                e(f"s_cbranch_scc1 L_nozflag{sfx}")
                store_one(e, S_H, None, f"s{S_ZFLAG}", "1")
                e.label(f"L_nozflag{sfx}")
            elif n == cfg.u_zpoll and g == sg[2]:
                e(f"s_mov_b32 s{S_T+1}, {ZFLAG_OFF}")
                e.vmem(zflag_load(), ("zf",))
            elif n == cfg.u_zpoll + 2 and g == sg[2]:
                e.wait(vm=kind("zf"))
                check_zflags(e, cfg, sfx)
                zok = True
            nb = n + 2 if g >= P.bar_gap else n + 1
            tgt = min(needed(nb) + ahead(nb), len(stream)) if nb < 20 else len(stream)
            rem = tgt - q.i
            if q.armed is None and rem > 0 and g + 1 < len(mf) and g + 1 != P.bar_gap:
                k = min(max(rem, 5), len(P.dma_gaps))
                if g in P.dma_gaps[:k] and fits(q.i, freed) and (q.ops[q.i][0] != "Z" or zok):
                    q.arm()
        assert q.armed is None
    while q.left():
        q.issue()
    e.stamp("p1 mfma issued")
    e.stamp("p1 mfma issued rt", real=True)


def epilogue1(e, cfg, q):
    e("s_nop 7")
    zs = [int(v) for v in cfg.epi_z.split(",")]
    for n in range(6):
        a = V_ACC + 16 * n
        t = V_T + 8 * (n & 1)
        d = V_FR + 4 * n
        budget = [zs[n]]
        def tick():
            if budget[0] > 0:
                budget[0] -= 1
                q.issue()
        for k in range(4):
            e(f"v_pk_mul_f32 v[{t+2*k}:{t+2*k+1}], v[{a+2*k}:{a+2*k+1}], s[{S_NL2E}:{S_NL2E+1}]")
        tick()
        for k in range(8):
            e(f"v_exp_f32 v{t+k}, v{t+k}")
        for k in range(4):
            e(f"v_pk_add_f32 v[{t+2*k}:{t+2*k+1}], v[{t+2*k}:{t+2*k+1}], 1.0 op_sel_hi:[1,0]")
        tick()
        for k in range(8):
            e(f"v_rcp_f32 v{t+k}, v{t+k}")
            if k == 3:
                tick()
        for k in range(4):
            e(f"v_pk_mul_f32 v[{t+2*k}:{t+2*k+1}], v[{t+2*k}:{t+2*k+1}], v[{a+2*k}:{a+2*k+1}]")
        for k in range(4):
            e(f"v_pk_mul_f32 v[{t+2*k}:{t+2*k+1}], v[{t+2*k}:{t+2*k+1}], v[{a+8+2*k}:{a+8+2*k+1}]")
        for k in range(4):
            e(f"v_cvt_pk_bf16_f32 v{d+k}, v{t+2*k}, v{t+2*k+1}")
        e.vmem(f"buffer_store_dwordx4 v[{d}:{d+3}], v{V_HST}, s[{S_H}:{S_H+3}], s{S_HS+n} offen {cfg.hflags}", ("hst",))
    e.stamp("h stores issued")


def handoff(e, cfg, q):
    q.issue(cfg.pre_z)
    e(f"s_mov_b32 s{S_HK}, s{S_HSV}")
    e(f"s_add_u32 s{S_T+2}, s{S_CI}, 49152")
    for i in range(1, 12):
        e(f"s_add_u32 s{S_HK+i}, s{S_HK+i-1}, 4096")
        e(f"s_cmp_eq_u32 s{S_HK+i}, s{S_T+2}")
        e(f"s_cselect_b32 s{S_HK+i}, s{S_CI}, s{S_HK+i}")
    e.wait(vm=kind("hst"))
    e("s_barrier")
    e.stamp("h stores acked")
    e(f"s_cmp_lg_u32 s{S_WV}, 0")
    e("s_cbranch_scc1 L_nohflag")
    store_one(e, S_H, V_FLO, "0", "15")
    e.label("L_nohflag")
    q.issue(cfg.post_z)
    e(f"s_mov_b32 s{S_SPIN}, {cfg.spin}")
    e.label("L_poll")
    e(f"buffer_load_dword v{V_T}, v{V_FLG}, s[{S_H}:{S_H+3}], 0 offen sc1")
    e("s_waitcnt vmcnt(0)")
    e(f"v_cmp_ne_u32 vcc, 1, v{V_T}")
    e("s_nop 1")
    e("s_cbranch_vccz L_poll_ok")
    e(f"s_sub_u32 s{S_SPIN}, s{S_SPIN}, 1")
    e(f"s_cmp_lg_u32 s{S_SPIN}, 0")
    e("s_cbranch_scc1 L_poll")
    e.label("L_poll_ok")
    e.vm = []
    e.stamp("flags seen")
    e.stamp("flags seen rt", real=True)


def phase2(e, cfg, q):
    NH = cfg.NH
    nload = [0]

    def hload():
        n = nload[0]
        if n >= 48:
            return
        ps, i = divmod(n, 12)
        r = V_HB + 4 * (n % NH)
        e.vmem(f"buffer_load_dwordx4 v[{r}:{r+3}], v{V_HL+ps}, s[{S_H}:{S_H+3}], s{S_HK+i} offen {cfg.hflags}", ("h", n))
        nload[0] += 1

    for k in range(NH - 1):
        hload()
        if q.left() and k >= 2:
            q.issue(1)
    rd_plan = {(7, 1): 0, (7, 3): 1, (8, 1): 2, (8, 3): 3, (9, 1): 4}
    for n in range(48):
        ps, i = divmod(n, 12)
        acc = V_A2 + 20 * (ps & 1)
        oth = V_A2 + 20 * (1 - (ps & 1))
        hb = V_HB + 4 * (n % NH)
        if ps == 0:
            while q.left() and q.ops[q.i][1] <= i:
                q.issue()
        for u in range(5):
            e.wait(vm=lambda t: t == ("h", n) or (t is not None and t[0] == "Z" and (t[1], t[2]) <= (i, u)))
            if i == 0 and ps >= 2:
                e.wait(lg=lambda t: t == ("exr", ps - 1, u))
            r = 20 * i + 4 * u
            c = "0" if (i == 0 and ps < 2) else f"v[{acc+4*u}:{acc+4*u+3}]"
            e(f"v_mfma_f32_16x16x32_bf16 v[{acc+4*u}:{acc+4*u+3}], a[{r}:{r+3}], v[{hb}:{hb+3}], {c}")
            if u == 0:
                hload()
            elif q.left() and u in (1, 3):
                q.issue()
            if ps >= 1 and 1 <= i <= 5 and u == 2:
                w = i - 1
                e.ds(f"ds_write_b128 v{V_EXW}, v[{oth+4*w}:{oth+4*w+3}] offset:{EX_OFF + (ps-1)*20480 + w*1024}", ("exw", ps))
            if ps >= 1 and (i, u) in rd_plan:
                w = rd_plan[(i, u)]
                e.ds(f"ds_read_b128 v[{oth+4*w}:{oth+4*w+3}], v{V_EXR + (ps == 3)} offset:{EX_OFF + (ps-1)*20480 + w*1024}", ("exr", ps, w))
            if ps >= 1 and i == 7 and u == 0:
                e.wait(lg=kind("exw"))
                e("s_barrier")
        if n == 11:
            e.stamp("p2 pass0 done")
    e.stamp("p2 mfma issued")
    e.wait(lg=ALL)
    e("s_nop 7")
    t = V_T
    k1, k0 = V_A2 + 20, V_A2
    for u in range(5):
        for k in range(2):
            e(f"v_pk_add_f32 v[{k1+4*u+2*k}:{k1+4*u+2*k+1}], v[{k1+4*u+2*k}:{k1+4*u+2*k+1}], v[{k0+4*u+2*k}:{k0+4*u+2*k+1}]")
        for k in range(2):
            e(f"v_cvt_pk_bf16_f32 v{t+2*u+k}, v{k1+4*u+2*k}, v{k1+4*u+2*k+1}")
        e.ds(f"ds_write_b64 v{V_OW}, v[{t+2*u}:{t+2*u+1}] offset:{32*u}")
    e.wait(lg=ALL)
    for k in range(3):
        e.ds(f"ds_read_b128 v[{V_HB+4*k}:{V_HB+4*k+3}], v{V_OR+k}", ("o", k))
    for k in range(3):
        e.wait(lg=lambda t: t == ("o", k))
        e.vmem(f"buffer_store_dwordx4 v[{V_HB+4*k}:{V_HB+4*k+3}], v{V_OG+k}, s[{S_OUT}:{S_OUT+3}], 0 offen {cfg.oflags}")


def write_stamps(e, cfg):
    if not cfg.stamps:
        return
    e("s_waitcnt vmcnt(0)")
    e.stamp("end")
    e(f"s_memrealtime s[{S_T+1}:{S_T+2}]")
    e("s_waitcnt lgkmcnt(0)")
    e(f"s_cmp_lg_u32 s{S_WV}, 0")
    e("s_cbranch_scc1 L_end")
    e(f"s_lshl_b32 s{S_T}, s2, 7"); e(f"s_add_u32 s{S_T}, s{S_T}, {STAMP_OFF}")
    e(f"v_mov_b32 v{V_T+1}, 0")
    vals = [f"s{S_STAMP}", f"s{S_T+1}"]
    for name, (i, real) in list(e.slots.items())[2:]:
        e(f"s_sub_u32 s{S_STAMP+2*i}, s{S_STAMP+2*i}, s{S_STAMP if real else S_STAMP + 2}")
        vals.append(f"s{S_STAMP+2*i}")
    for i, v in enumerate(vals):
        e(f"v_mov_b32 v{V_T}, {v}")
        e(f"buffer_store_dword v{V_T}, v{V_T+1}, s[{S_H}:{S_H+3}], s{S_T} offen offset:{4*i}")
        e("s_nop 1")


HEADER = """; SwiGLU FFN: out = (silu(x@w1) * (x@w3)) @ w2, bf16, x[2048,640] w1,w3[640,1536] w2[1536,640]
; @launch grid=(256,1,1) block=(256,1,1) lds=163840
"""


def generate(cfg):
    e = E(cfg)
    e.L += ['.amdgcn_target "amdgcn-amd-amdhsa--gfx950"', ".text", f".globl {KN}", ".p2align 8",
            f".type {KN},@function", f"{KN}:"]
    if cfg.diag_rt:
        e("s_memrealtime s[100:101]")
    entry(e, cfg)
    phase1(e, cfg, PathA(cfg))
    vmA = list(e.vm)
    e.label("L_join")
    q = Q(e, Z_OPS[cfg.tail_ops:])
    if not cfg.diag:
        epilogue1(e, cfg, q)
        handoff(e, cfg, q)
        phase2(e, cfg, q)
    if cfg.diag_rt:
        e.label("L_diag")
        e(f"s_memrealtime s[{S_T+1}:{S_T+2}]")
        e("s_waitcnt lgkmcnt(0)")
        e(f"s_sub_u32 s{S_T+1}, s{S_T+1}, s100")
        e(f"s_cmp_lt_u32 s{S_T+1}, {cfg.diag_rt}")
        e("s_cbranch_scc1 L_diag")
    write_stamps(e, cfg)
    e("s_endpgm")
    e.label("L_pathB")
    e.vm, e.lg = [], []
    phase1(e, cfg, PathB(cfg))
    assert all(t[0] == "Z" for t in vmA) and all(t[0] == "Z" for t in e.vm) and not e.lg
    e("s_branch L_join")
    e.label("L_end")
    e("s_endpgm")
    e.L += ['.section .rodata,"a"', ".p2align 6", f".amdhsa_kernel {KN}",
            "  .amdhsa_next_free_vgpr 512", "  .amdhsa_next_free_sgpr 102", "  .amdhsa_accum_offset 256",
            "  .amdhsa_group_segment_fixed_size 0", "  .amdhsa_kernarg_size 56", "  .amdhsa_user_sgpr_count 2",
            "  .amdhsa_user_sgpr_kernarg_segment_ptr 1", "  .amdhsa_system_sgpr_workgroup_id_x 1",
            "  .amdhsa_float_denorm_mode_32 3", ".end_amdhsa_kernel"]
    if cfg.stamps:
        print("stamp columns: rt_start, rt_len,", ", ".join(list(e.slots)[2:]))
    return HEADER + "\n".join(e.L) + "\n"


def main():
    ap = argparse.ArgumentParser()
    ap.add_argument("-o", default="standalone__glu_gated_swiglu__prompt.s")
    ap.add_argument("opts", nargs="*")
    a = ap.parse_args()
    cfg = Cfg()
    for o in a.opts:
        k, v = o.split("=", 1)
        cur = getattr(cfg, k)
        if isinstance(cur, bool):
            v = v not in ("0", "False", "false")
        elif isinstance(cur, int):
            v = int(v)
        setattr(cfg, k, v)
    open(a.o, "w").write(generate(cfg))


if __name__ == "__main__":
    main()
```

```python
import argparse

KN = "standalone__glu_gated_swiglu__prompt_kernel"
STAMP_OFF = 128 << 20
H_BYTES = 2048 * 1536 * 2
FLAG_OFF = H_BYTES
ZFLAG_OFF = FLAG_OFF + 4096
W2T_OFF = FLAG_OFF + 8192
WS_REC = W2T_OFF + 1966080


class Cfg:
    stamps = False
    A = 7
    Aend = 7
    NWA = 6
    NWB = 5
    rot1 = 1
    rot2 = 0
    rot2mask = 1
    korder = "skip"
    rot2rb = 2
    barA = 9
    map2 = "8x4"
    NH = 8
    tail_ops = 7
    epi_z = "0,0,0,1,2,2"
    pre_z = 10
    post_z = 20
    p_after = 2
    u_pt = 4
    u_zflag = 8
    u_zpoll = 12
    hflags = "sc1"
    oflags = ""
    spin = 60000
    codepf = True
    wsbase = 0
    diag_rt = 0
    exfil = ""
    diag = ""
    p1stamps = "2,10"


class E:
    def __init__(self, cfg):
        self.L, self.vm, self.lg, self.cfg = [], [], [], cfg
        self.slots = {}

    def __call__(self, s):
        self.L.append("    " + s)

    def label(self, s):
        self.L.append(s + ":")

    def vmem(self, s, tag=None):
        self(s)
        self.vm.append(tag)

    def ds(self, s, tag=None):
        self(s)
        self.lg.append(tag)

    @staticmethod
    def _last(q, pred):
        last = -1
        for i, t in enumerate(q):
            if pred(t):
                last = i
        return last

    def wait(self, vm=None, lg=None):
        parts = []
        if vm is not None:
            last = self._last(self.vm, vm)
            if last >= 0:
                n = len(self.vm) - 1 - last
                if n > 63:
                    n, last = 63, len(self.vm) - 64
                parts.append(f"vmcnt({n})")
                self.vm = self.vm[last + 1:]
        if lg is not None:
            last = self._last(self.lg, lg)
            if last >= 0:
                n = len(self.lg) - 1 - last
                if n > 15:
                    n, last = 15, len(self.lg) - 16
                parts.append(f"lgkmcnt({n})")
                self.lg = self.lg[last + 1:]
        if parts:
            self("s_waitcnt " + " ".join(parts))

    def stamp(self, name, real=False):
        if self.cfg.exfil == name and not real:
            self("s_memrealtime s[98:99]")
        if not self.cfg.stamps:
            return
        if self.cfg.diag and name in ("setup done",):
            return
        if name not in self.slots:
            self.slots[name] = (len(self.slots), real)
        r = S_STAMP + 2 * self.slots[name][0]
        assert r + 1 <= 101, name
        self(f"{'s_memrealtime' if real else 's_memtime'} s[{r}:{r+1}]   ; stamp {name}")


ALL = lambda t: True
def kind(*ks):
    return lambda t: t is not None and t[0] in ks

S_PT0, S_PT1 = 3, 4
S_SPIN = 5
S_ZFLAG = 6
S_X, S_W, S_W2, S_H, S_OUT, S_DBG = 8, 12, 16, 20, 24, 28
S_WV = 32
S_CI, S_PHI = 33, 34
S_XK, S_WK = 35, 36
S_M0X, S_M0W = 37, 38
S_ZK, S_ZEND = 39, 40
S_HS = 41
S_PS, S_PG = 47, 48
S_T = 49
S_NL2E = 58
S_HK = 60
S_XT = 60
S_HSV = 70
S_STAMP = 72
KA = 60

V_LANE = 1
V_XO = 2
V_WO = 8
V_XA = 10
V_WA = 14
V_HST = 17
V_PTS = 18
V_PTA = 19
V_Z = 20
V_HL = 22
V_EXW = 26
V_EXR = 27
V_OW = 29
V_OR = 30
V_OG = 33
V_DBG = 36
V_FLG = 37
V_FLO = 38
V_ZF = 40
V_T = 44
V_FR = 64
V_PT = 144
V_ACC = 160
V_HB = 64
V_A2 = 112

PT_OFF = 131072
EX_OFF = 0
ST_OFF = 61440
OOB = 0x40000000


def srd(e, base, ptr, size):
    e(f"s_mov_b32 s{base}, s{ptr}")
    e(f"s_and_b32 s{base+1}, s{ptr+1}, 0xffff")
    e(f"s_mov_b32 s{base+2}, {size}")
    e(f"s_mov_b32 s{base+3}, 0x20000")


def mod_sub(e, r, n, tmp, times):
    for _ in range(times):
        e(f"s_sub_u32 s{tmp}, s{r}, {n}")
        e(f"s_cmp_ge_u32 s{r}, {n}")
        e(f"s_cselect_b32 s{r}, s{tmp}, s{r}")


def entry(e, cfg):
    T = S_T; L = V_LANE; t = V_T
    e("s_cmp_ge_u32 s2, 256")
    e("s_cbranch_scc1 L_end")
    e(f"s_load_dwordx8 s[{KA}:{KA+7}], s[0:1], 0")
    e(f"s_load_dwordx4 s[{KA+8}:{KA+11}], s[0:1], 32")
    e(f"s_load_dwordx2 s[6:7], s[0:1], 48")
    e.stamp("start rt", real=True)
    e.stamp("start")
    if cfg.codepf:
        e("s_cmp_ge_u32 s2, 16")
        e("s_cbranch_scc1 L_pfskip")
        e(f"s_getpc_b64 s[{T+1}:{T+2}]")
        e.label("L_pfbase")
        e(f"v_min_u32 v{t+8}, (L_end - L_pfbase) / 128, v0")
        e(f"v_lshlrev_b32 v{t+8}, 7, v{t+8}")
        e(f"v_mov_b32 v{t+10}, s{T+2}")
        e(f"v_add_co_u32 v{t+8}, vcc, s{T+1}, v{t+8}")
        e("s_nop 1")
        e(f"v_addc_co_u32 v{t+9}, vcc, 0, v{t+10}, vcc")
        e(f"global_load_dword v{t+19}, v[{t+8}:{t+9}], off")
        e.label("L_pfskip")
    e(f"v_lshrrev_b32 v{t}, 6, v0")
    e(f"v_and_b32 v{L}, 63, v0")
    e(f"v_readfirstlane_b32 s{S_WV}, v{t}")
    e(f"s_and_b32 s{T}, s2, 1")
    e(f"s_bfe_u32 s{T+1}, s2, 0x20001")
    e(f"s_lshr_b32 s{T+2}, s2, 3")
    e(f"v_lshrrev_b32 v{t+3}, 3, v{L}")
    e(f"v_and_b32 v{t+2}, 7, v{L}")
    e(f"s_and_b32 s{T+4}, s{S_WV}, 1")
    e(f"s_lshr_b32 s{T+5}, s{S_WV}, 1")
    e(f"s_cmp_ge_u32 s{T+2}, 30")
    e("s_cbranch_scc1 L_pathB")


def finish_phi(e, cfg):
    mod_sub(e, S_PHI, 10, S_T + 6, 1)
    if cfg.rot1 == 0:
        e(f"s_mov_b32 s{S_PHI}, 0")
    if cfg.rot1 == 2:
        e(f"s_and_b32 s{S_PHI}, s{S_PHI}, 14")
    e(f"s_lshl_b32 s{S_XK}, s{S_PHI}, 7")
    e(f"s_mul_i32 s{S_WK}, s{S_PHI}, 196608")


def x_dma_offsets(e, row0, n):
    T = S_T; L = V_LANE; t = V_T
    e(f"s_lshl_b32 s{T+6}, s{T+4}, 2")
    e(f"v_lshrrev_b32 v{t}, 4, v{L}")
    e(f"v_add_u32 v{t}, s{T+6}, v{t}")
    e(f"v_xor_b32 v{t}, v{t}, v{t+2}")
    e(f"s_lshl_b32 s{T+6}, s{S_WV}, 3"); e(f"s_add_u32 s{T+6}, s{T+6}, s{row0}")
    e(f"v_add_u32 v{t+1}, s{T+6}, v{t+3}")
    e(f"v_mul_u32_u24 v{t+1}, 1280, v{t+1}")
    e(f"v_lshl_add_u32 v{V_XO}, v{t}, 4, v{t+1}")
    for j in range(1, n):
        e(f"v_add_u32 v{V_XO+j}, {40960*j}, v{V_XO}")
    e(f"s_lshl_b32 s{S_M0X}, s{S_WV}, 10")


def first_srds(e, cfg):
    e("s_waitcnt lgkmcnt(0)")
    e(f"s_bitcmp1_b32 s{S_WV}, 0")
    e(f"s_cselect_b32 s{S_W}, s{KA+4}, s{KA+2}")
    e(f"s_cselect_b32 s{S_W+1}, s{KA+5}, s{KA+3}")
    e(f"s_and_b32 s{S_W+1}, s{S_W+1}, 0xffff")
    e(f"s_mov_b32 s{S_W+2}, 1966080")
    e(f"s_mov_b32 s{S_W+3}, 0x20000")
    srd(e, S_X, KA, 2621440)


class PathA:
    name = "A"; XSZ = 24576; XBASE = 0; WBASE = 73728; WSZ = 8192; NXI = 6; NWI = 2

    def __init__(self, cfg):
        self.cfg, self.NX, self.NW = cfg, 3, cfg.NWA
        self.bar_gap = cfg.barA
        assert cfg.barA <= 9
        assert self.WBASE + self.NW * self.WSZ <= PT_OFF

    def early(self, e):
        T = S_T; L = V_LANE; t = V_T
        e(f"s_mul_i32 s{T+3}, s{T+2}, 52"); e(f"s_lshr_b32 s{T+3}, s{T+3}, 8")
        e(f"s_mul_i32 s{T+6}, s{T+3}, 5"); e(f"s_sub_u32 s{T+2}, s{T+2}, s{T+6}")
        e(f"s_add_u32 s{T+6}, s{T+6}, s{T+1}"); e(f"s_mul_i32 s{T+6}, s{T+6}, 86"); e(f"s_lshr_b32 s{T+6}, s{T+6}, 8")
        e(f"s_lshl_b32 s{S_PHI}, s{T+2}, 1"); e(f"s_add_u32 s{S_PHI}, s{S_PHI}, s{T}"); e(f"s_add_u32 s{S_PHI}, s{S_PHI}, s{T+6}")
        e(f"s_mul_i32 s{T+7}, s{T}, 5")
        e(f"s_add_u32 s{T+7}, s{T+7}, s{T+2}")
        e(f"s_mul_i32 s{S_CI}, s{T+1}, 6"); e(f"s_add_u32 s{S_CI}, s{S_CI}, s{T+3}")
        finish_phi(e, self.cfg)
        e(f"s_lshl_b32 s{T+6}, s{T+5}, 4")
        e(f"v_add_u32 v{t}, s{T+6}, v{t+3}")
        e(f"v_mul_u32_u24 v{t}, 3072, v{t}")
        e(f"v_bfe_u32 v{t+1}, v{L}, 4, 1")
        e(f"v_lshlrev_b32 v{t+1}, 1, v{t+1}")
        e(f"v_xor_b32 v{t+1}, v{t+1}, v{t+2}")
        e(f"s_lshl_b32 s{T+6}, s{S_CI}, 7")
        e(f"v_lshl_add_u32 v{t}, v{t+1}, 4, v{t}")
        e(f"v_add_u32 v{V_WO}, s{T+6}, v{t}")
        e(f"v_xor_b32 v{V_WO+1}, 64, v{V_WO}")
        e(f"v_add_u32 v{V_WO+1}, {8*3072}, v{V_WO+1}")
        e(f"s_mul_i32 s{T+8}, s{T+7}, 192")
        x_dma_offsets(e, T + 8, 6)
        e(f"s_lshl_b32 s{S_M0W}, s{T+4}, 12"); e(f"s_lshl_b32 s{T+6}, s{T+5}, 11"); e(f"s_add_u32 s{S_M0W}, s{S_M0W}, s{T+6}")

    def late(self, e):
        T = S_T; L = V_LANE; t = V_T
        e(f"s_and_b32 s{T}, s{S_WV}, 1")
        e(f"s_lshr_b32 s{T+1}, s{S_WV}, 1")
        e(f"v_and_b32 v{t}, 15, v{L}")
        e(f"s_mul_i32 s{T+2}, s{T+1}, 96")
        e(f"v_add_u32 v{t}, s{T+2}, v{t}")
        e(f"v_lshlrev_b32 v{t}, 7, v{t}")
        e(f"v_bfe_u32 v{t+1}, v{L}, 1, 3")
        e(f"v_lshrrev_b32 v{t+2}, 4, v{L}")
        e(f"v_xor_b32 v{t+1}, v{t+1}, v{t+2}")
        e(f"v_lshl_add_u32 v{V_XA}, v{t+1}, 4, v{t}")
        e(f"v_xor_b32 v{V_XA+1}, 64, v{V_XA}")
        e(f"v_bfe_u32 v{t+3}, v{L}, 2, 2")
        e(f"v_lshl_add_u32 v{t}, v{t+2}, 3, v{t+3}")
        e(f"v_lshlrev_b32 v{t}, 7, v{t}")
        e(f"v_and_b32 v{t+4}, 3, v{L}")
        e(f"v_lshl_add_u32 v{t}, v{t+4}, 3, v{t}")
        e(f"v_bfe_u32 v{t+4}, v{L}, 3, 2")
        e(f"s_lshl_b32 s{T+2}, s{T}, 1")
        e(f"v_xor_b32 v{t+4}, s{T+2}, v{t+4}")
        e(f"v_lshl_add_u32 v{t}, v{t+4}, 5, v{t}")
        e(f"v_add_u32 v{V_WA}, {self.WBASE}, v{t}")
        e(f"v_xor_b32 v{V_WA+1}, 32, v{V_WA}")
        e(f"v_lshlrev_b32 v{V_HST}, 4, v{L}")
        e(f"s_lshl_b32 s{T+2}, s{S_CI}, 1"); e(f"s_add_u32 s{T+2}, s{T+2}, s{T}"); e(f"s_lshl_b32 s{T+2}, s{T+2}, 12")
        e(f"s_lshl_b32 s{T+3}, s{T+7}, 1"); e(f"s_add_u32 s{T+3}, s{T+3}, s{T+1}"); e(f"s_mul_i32 s{T+3}, s{T+3}, 6")
        for tb in range(6):
            e(f"s_add_u32 s{T+4}, s{T+3}, {tb}")
            e(f"s_lshr_b32 s{T+5}, s{T+4}, 2"); e(f"s_mul_i32 s{T+5}, s{T+5}, 196608")
            e(f"s_and_b32 s{T+4}, s{T+4}, 3"); e(f"s_lshl_b32 s{T+4}, s{T+4}, 10")
            e(f"s_add_u32 s{T+4}, s{T+4}, s{T+5}"); e(f"s_add_u32 s{S_HS+tb}, s{T+4}, s{T+2}")
        e(f"s_mul_i32 s{T+2}, s{T+7}, 384"); e(f"s_lshl_b32 s{T+3}, s{S_CI}, 2"); e(f"s_add_u32 s{T+2}, s{T+2}, s{T+3}")
        e(f"s_add_u32 s{T+2}, s{T+2}, {FLAG_OFF}")
        e(f"v_min_u32 v{t}, 2, v{L}")
        e(f"v_lshlrev_b32 v{t}, 7, v{t}")
        e(f"v_add_u32 v{V_FLO}, s{T+2}, v{t}")

    def w_op(self, u, p):
        pre = [f"s_add_u32 m0, s{S_M0W}, {self.WBASE + (u % self.NW) * self.WSZ + p * 1024}"]
        return pre, f"buffer_load_dwordx4 v{V_WO+p}, s[{S_W}:{S_W+3}], s{S_WK} offen lds"

    def reads(self, n):
        st = V_FR + 40 * (n & 1)
        xs, ws = (n // 2) % self.NX, n % self.NW
        def x(tb):
            r = st + 16 + 4 * tb
            return (("x", n, tb), f"ds_read_b128 v[{r}:{r+3}], v{V_XA + (n & 1)} offset:{xs*self.XSZ + tb*2048}")
        def w(k, jj):
            m, fb = divmod(k, 2)
            r = st + 4 * k + 2 * jj
            return (("w", n, k), f"ds_read_b64_tr_b16 v[{r}:{r+1}], v{V_WA+fb} offset:{ws*self.WSZ + m*4096 + jj*512}")
        return [x(0), w(0, 0), w(0, 1), w(1, 0), w(1, 1), w(2, 0), w(2, 1), w(3, 0), w(3, 1), x(1), x(2), x(3), x(4), x(5)]

    def mfmas(self, n):
        st = V_FR + 40 * (n & 1)
        out = []
        for tb in range(6):
            for k in range(4):
                a = V_ACC + 16 * tb + 4 * k
                c = "0" if n == 0 else f"v[{a}:{a+3}]"
                out.append(([("x", n, tb), ("w", n, k)],
                            f"v_mfma_f32_16x16x32_bf16 v[{a}:{a+3}], v[{st+4*k}:{st+4*k+3}], v[{st+16+4*tb}:{st+16+4*tb+3}], {c}"))
        return out

    def read_plan(self, n):
        r = self.reads(n + 1) if n < 19 else []
        return {g + 1 + self.bar_gap: [x] for g, x in enumerate(r)}

    dma_gaps = [2, 6, 11, 15, 19, 4, 13, 17, 21, 0]
    side_gaps = (1, 3, 5, 7)


class PathB:
    name = "B"; XSZ = 16384; XBASE = 0; WBASE = 49152; WSZ = 12288; NXI = 4; NWI = 3
    order = [(0, 0), (1, 0), (0, 1), (1, 1), (2, 0), (2, 1)]

    def __init__(self, cfg):
        self.cfg, self.NX, self.NW = cfg, 3, cfg.NWB
        assert self.WBASE + self.NW * self.WSZ <= PT_OFF

    def early(self, e):
        T = S_T; L = V_LANE; t = V_T
        e(f"s_lshl_b32 s{S_CI}, s{T+1}, 1"); e(f"s_add_u32 s{S_CI}, s{S_CI}, s{T}"); e(f"s_lshl_b32 s{S_CI}, s{S_CI}, 1")
        e(f"s_add_u32 s{S_CI}, s{S_CI}, s{T+2}"); e(f"s_sub_u32 s{S_CI}, s{S_CI}, 30")
        e(f"s_mul_i32 s{S_PHI}, s{S_CI}, 5"); e(f"s_lshr_b32 s{S_PHI}, s{S_PHI}, 3")
        finish_phi(e, self.cfg)
        e(f"v_lshrrev_b32 v{t}, 2, v{L}")
        e(f"s_lshl_b32 s{T+6}, s{T+5}, 4")
        e(f"v_add_u32 v{t}, s{T+6}, v{t}")
        e(f"v_mul_u32_u24 v{t}, 3072, v{t}")
        e(f"v_and_b32 v{t+1}, 3, v{L}")
        e(f"v_xor_b32 v{t+1}, s{T+4}, v{t+1}")
        e(f"v_lshl_add_u32 v{t}, v{t+1}, 4, v{t}")
        e(f"s_mul_i32 s{T+6}, s{S_CI}, 192")
        e(f"v_add_u32 v{V_WO}, s{T+6}, v{t}")
        e(f"s_mov_b32 s{T+8}, 1920")
        x_dma_offsets(e, T + 8, 4)
        e(f"s_mul_i32 s{S_M0W}, s{T+4}, 6144"); e(f"s_lshl_b32 s{T+6}, s{T+5}, 10"); e(f"s_add_u32 s{S_M0W}, s{S_M0W}, s{T+6}")

    def late(self, e):
        T = S_T; L = V_LANE; t = V_T
        e(f"s_and_b32 s{T}, s{S_WV}, 1")
        e(f"s_lshr_b32 s{T+1}, s{S_WV}, 1")
        e(f"v_and_b32 v{t}, 31, v{L}")
        e(f"s_lshl_b32 s{T+2}, s{T+1}, 6")
        e(f"v_add_u32 v{t}, s{T+2}, v{t}")
        e(f"v_lshlrev_b32 v{t}, 7, v{t}")
        e(f"v_bfe_u32 v{t+1}, v{L}, 1, 3")
        e(f"v_lshrrev_b32 v{t+2}, 5, v{L}")
        e(f"v_xor_b32 v{t+1}, v{t+1}, v{t+2}")
        for s4 in range(4):
            e(f"v_xor_b32 v{t+3}, {2*s4}, v{t+1}")
            e(f"v_lshl_add_u32 v{V_XA+s4}, v{t+3}, 4, v{t}")
        e(f"v_bfe_u32 v{t}, v{L}, 4, 1")
        e(f"v_mul_u32_u24 v{t+1}, 6144, v{t}")
        e(f"v_lshl_add_u32 v{t+1}, v{t+2}, 9, v{t+1}")
        e(f"v_bfe_u32 v{t+4}, v{L}, 2, 2")
        e(f"v_lshl_add_u32 v{t+1}, v{t+4}, 6, v{t+1}")
        e(f"v_and_b32 v{t+4}, 1, v{L}")
        e(f"v_lshl_add_u32 v{t+1}, v{t+4}, 3, v{t+1}")
        e(f"v_bfe_u32 v{t+4}, v{L}, 1, 1")
        e(f"v_lshl_add_u32 v{t+1}, v{t+4}, 5, v{t+1}")
        e(f"s_mul_i32 s{T+2}, s{T}, 3")
        e(f"s_mul_i32 s{T+5}, s{S_CI}, 12288")
        e(f"s_add_u32 s{T+6}, s{T+1}, 30"); e(f"s_mul_i32 s{T+6}, s{T+6}, 196608"); e(f"s_add_u32 s{T+5}, s{T+5}, s{T+6}")
        for j in range(3):
            e(f"s_add_u32 s{T+3}, s{T+2}, {j}")
            e(f"s_and_b32 s{T+4}, s{T+3}, 1")
            e(f"s_lshr_b32 s{T+3}, s{T+3}, 1")
            e(f"v_xor_b32 v{t+3}, s{T+4}, v{t}")
            e(f"v_lshl_add_u32 v{t+3}, v{t+3}, 4, v{t+1}")
            e(f"s_lshl_b32 s{T+7}, s{T+3}, 11"); e(f"s_add_u32 s{T+7}, s{T+7}, {self.WBASE}")
            e(f"v_add_u32 v{V_WA+j}, s{T+7}, v{t+3}")
            e(f"s_lshl_b32 s{T+3}, s{T+3}, 12"); e(f"s_lshl_b32 s{T+4}, s{T+4}, 9")
            e(f"s_add_u32 s{T+3}, s{T+3}, s{T+4}"); e(f"s_add_u32 s{T+3}, s{T+3}, s{T+5}")
            for n, (jn, tb) in enumerate(self.order):
                if jn == j:
                    e(f"s_add_u32 s{S_HS+n}, s{T+3}, {tb*2048}")
        e(f"v_lshlrev_b32 v{t+1}, 10, v{t}")
        e(f"v_lshl_add_u32 v{t+1}, v{t+2}, 8, v{t+1}")
        e(f"v_and_b32 v{t+3}, 15, v{L}")
        e(f"v_lshl_add_u32 v{V_HST}, v{t+3}, 4, v{t+1}")
        e(f"s_lshl_b32 s{T+2}, s{S_CI}, 2"); e(f"s_add_u32 s{T+2}, s{T+2}, {FLAG_OFF + 30*128}")
        e(f"s_cmp_lt_u32 s{S_CI}, 8"); e(f"s_cselect_b32 s{T+3}, 32, 0")
        e(f"v_and_b32 v{t}, 1, v{L}"); e(f"v_lshlrev_b32 v{t}, 7, v{t}")
        e(f"v_and_b32 v{t+1}, 2, v{L}"); e(f"v_mul_u32_u24 v{t+1}, s{T+3}, v{t+1}")
        e(f"v_add3_u32 v{V_FLO}, v{t}, v{t+1}, s{T+2}")

    def w_op(self, u, p):
        pre = [f"s_add_u32 m0, s{S_M0W}, {self.WBASE + (u % self.NW) * self.WSZ + p * 2048 - p * 64}"]
        off = f" offset:{64*p}" if p else ""
        return pre, f"buffer_load_dwordx4 v{V_WO}, s[{S_W}:{S_W+3}], s{S_WK} offen{off} lds"

    def reads16(self, s):
        st = V_FR + 20 * (s & 1)
        xs, ws = (s // 4) % self.NX, (s // 2) % self.NW
        def x(tb):
            return (("x", s, tb), f"ds_read_b128 v[{st+4*tb}:{st+4*tb+3}], v{V_XA + s % 4} offset:{xs*self.XSZ + tb*4096}")
        def w(j, jj):
            r = st + 8 + 4 * j + 2 * jj
            return (("w", s, j), f"ds_read_b64_tr_b16 v[{r}:{r+1}], v{V_WA+j} offset:{ws*self.WSZ + (s&1)*1024 + jj*256}")
        return [x(0), w(0, 0), w(0, 1), w(1, 0), w(1, 1), x(1), w(2, 0), w(2, 1)]

    def reads(self, n):
        return self.reads16(2 * n)

    def mfmas(self, n):
        out = []
        for s in (2 * n, 2 * n + 1):
            st = V_FR + 20 * (s & 1)
            for i, (j, tb) in enumerate(self.order):
                a = V_ACC + 16 * i
                c = "0" if s == 0 else f"v[{a}:{a+15}]"
                out.append(([("x", s, tb), ("w", s, j)],
                            f"v_mfma_f32_32x32x16_bf16 v[{a}:{a+15}], v[{st+8+4*j}:{st+8+4*j+3}], v[{st+4*tb}:{st+4*tb+3}], {c}"))
        return out

    def read_plan(self, n):
        plan = {}
        for half, s in ((0, 2 * n + 1), (6, 2 * n + 2)):
            r = self.reads16(s) if s < 40 else []
            for i in range(len(r) // 2):
                plan[half + i] = r[2 * i:2 * i + 2]
        return plan

    dma_gaps = [7, 9, 1, 3, 10, 4, 8, 2]
    side_gaps = (4, 5, 10, 11)
    bar_gap = 6


def setup_common_late(e, cfg):
    T = S_T; L = V_LANE; t = V_T
    srd(e, S_W2, KA + 6, 1966080)
    srd(e, S_OUT, KA + 8, 2621440)
    srd(e, S_DBG, KA + 10, 256)
    e(f"s_mov_b32 s{T+2}, s2")
    mod_sub(e, T + 2, 240, T + 3, 1)
    e(f"s_mul_i32 s{S_PS}, s{T+2}, 205"); e(f"s_lshr_b32 s{S_PS}, s{S_PS}, 10")
    e(f"s_mul_i32 s{T+3}, s{S_PS}, 5"); e(f"s_sub_u32 s{S_PG}, s{T+2}, s{T+3}")
    e(f"s_mul_i32 s{S_PT0}, s{S_PS}, 40960"); e(f"s_lshl_b32 s{T+3}, s{S_PG}, 8"); e(f"s_add_u32 s{S_PT0}, s{S_PT0}, s{T+3}")
    e(f"s_mul_i32 s{T+3}, s{S_WV}, 10240"); e(f"s_add_u32 s{S_PT0}, s{S_PT0}, s{T+3}")
    e(f"s_add_u32 s{S_PT1}, s{S_PT0}, 5120")
    e(f"v_lshrrev_b32 v{t+2}, 4, v{L}")
    e(f"v_and_b32 v{t+6}, 15, v{L}")
    e(f"v_mul_u32_u24 v{t}, 1280, v{t+2}")
    e(f"v_lshl_add_u32 v{V_PTS}, v{t+6}, 4, v{t}")
    e(f"v_lshrrev_b32 v{t}, 2, v{L}"); e(f"v_lshlrev_b32 v{t}, 8, v{t}")
    e(f"v_and_b32 v{t+1}, 3, v{L}"); e(f"v_lshl_add_u32 v{t}, v{t+1}, 3, v{t}")
    e(f"s_lshl_b32 s{T+2}, s{S_WV}, 6"); e(f"s_add_u32 s{T+2}, s{T+2}, {PT_OFF}")
    e(f"v_add_u32 v{V_PTA}, s{T+2}, v{t}")
    e(f"s_lshl_b32 s{T+2}, s{S_PG}, 2"); e(f"s_add_u32 s{T+2}, s{T+2}, s{S_WV}"); e(f"s_lshl_b32 s{T+2}, s{T+2}, 1")
    e(f"s_mul_i32 s{T+3}, s{S_PS}, 5120"); e(f"s_add_u32 s{T+3}, s{T+3}, {W2T_OFF}")
    for c in range(2):
        e(f"s_add_u32 s{T+4}, s{T+2}, {c}")
        e(f"s_mul_i32 s{T+5}, s{T+4}, 52"); e(f"s_lshr_b32 s{T+5}, s{T+5}, 8"); e(f"s_mul_i32 s{T+5}, s{T+5}, {245760-5120}")
        e(f"s_lshl_b32 s{T+4}, s{T+4}, 10"); e(f"s_add_u32 s{T+4}, s{T+4}, s{T+5}"); e(f"s_add_u32 s{S_PS+c}, s{T+4}, s{T+3}")
    e(f"s_mov_b32 s{S_XT}, s{S_XK}")
    for k in range(1, 10):
        if cfg.korder == "skip":
            e(f"s_cmp_gt_u32 s{S_XK}, {128*(k-1)}")
            e(f"s_cselect_b32 s{S_XT+k}, {128*(k-1)}, {128*k}" if k == 1 else f"s_cselect_b32 s{S_XT+k}, s{T+8}, s{T+7}")
            e(f"s_mov_b32 s{T+8}, {128*k}"); e(f"s_mov_b32 s{T+7}, {128*(k+1)}")
        else:
            e(f"s_add_u32 s{S_XT+k}, s{S_XT+k-1}, 128"); e(f"s_cmp_eq_u32 s{S_XT+k}, 1280"); e(f"s_cselect_b32 s{S_XT+k}, 0, s{S_XT+k}")
    e(f"s_lshl_b32 s{S_ZFLAG}, s2, 2"); e(f"s_add_u32 s{S_ZFLAG}, s{S_ZFLAG}, {ZFLAG_OFF}")
    e(f"s_mov_b32 s{S_NL2E}, 0xbfb8aa3b"); e(f"s_mov_b32 s{S_NL2E+1}, 0xbfb8aa3b")
    RB, NJ = T + 7, T + 8
    e(f"s_and_b32 s{T}, s2, 7"); e(f"s_lshr_b32 s{T+1}, s2, 3")
    if cfg.map2 == "4x8":
        e(f"s_lshl_b32 s{RB}, s{T}, 2"); e(f"s_lshr_b32 s{T+2}, s{T+1}, 3"); e(f"s_add_u32 s{RB}, s{RB}, s{T+2}")
        e(f"s_and_b32 s{NJ}, s{T+1}, 7")
        e(f"s_mul_i32 s{T+2}, s{T+2}, 3")
        if cfg.rot2rb == 2:
            e(f"s_bfe_u32 s{T+2}, s{T+1}, 0x10003"); e(f"s_mul_i32 s{T+2}, s{T+2}, 6")
    else:
        e(f"s_lshr_b32 s{RB}, s{T}, 1"); e(f"s_lshl_b32 s{RB}, s{RB}, 3"); e(f"s_lshr_b32 s{T+2}, s{T+1}, 2"); e(f"s_add_u32 s{RB}, s{RB}, s{T+2}")
        e(f"s_and_b32 s{NJ}, s{T}, 1"); e(f"s_lshl_b32 s{NJ}, s{NJ}, 2"); e(f"s_and_b32 s{T+3}, s{T+1}, 3"); e(f"s_add_u32 s{NJ}, s{NJ}, s{T+3}")
        e(f"s_mul_i32 s{T+2}, s{T+2}, 3"); e(f"s_lshr_b32 s{T+2}, s{T+2}, 1")
        if cfg.rot2rb == 2:
            e(f"s_bfe_u32 s{T+2}, s{T+1}, 0x10002"); e(f"s_mul_i32 s{T+2}, s{T+2}, 6")
    e(f"s_and_b32 s{T+3}, s{NJ}, {cfg.rot2mask}"); e(f"s_mul_i32 s{T+3}, s{T+3}, {cfg.rot2}")
    if cfg.rot2rb:
        e(f"s_add_u32 s{T+3}, s{T+3}, s{T+2}")
    mod_sub(e, T + 3, 12, T + 2, 1)
    e(f"s_mul_i32 s{T+4}, s{S_WV}, 12")
    e(f"s_mul_i32 s{T+5}, s{NJ}, 48"); e(f"s_add_u32 s{T+5}, s{T+5}, s{T+4}")
    e(f"s_mul_i32 s{S_ZEND}, s{T+5}, 5120"); e(f"s_add_u32 s{S_ZEND}, s{S_ZEND}, {W2T_OFF}")
    e(f"s_mul_i32 s{T+6}, s{T+3}, 5120"); e(f"s_add_u32 s{S_ZK}, s{S_ZEND}, s{T+6}")
    e(f"s_add_u32 s{S_ZEND}, s{S_ZEND}, 61440")
    e(f"s_mul_i32 s{T+5}, s{RB}, 48"); e(f"s_add_u32 s{T+5}, s{T+5}, s{T+4}"); e(f"s_lshl_b32 s{T+5}, s{T+5}, 12")
    e(f"s_mov_b32 s{S_CI}, s{T+5}")
    e(f"s_lshl_b32 s{T+3}, s{T+3}, 12"); e(f"s_add_u32 s{S_HSV}, s{T+5}, s{T+3}")
    e(f"v_lshlrev_b32 v{V_Z}, 4, v{L}")
    e(f"v_add_u32 v{V_Z+1}, 4096, v{V_Z}")
    for ps in range(4):
        e(f"s_add_u32 s{T+2}, s{S_WV}, {ps+1}"); e(f"s_and_b32 s{T+2}, s{T+2}, 3"); e(f"s_lshl_b32 s{T+2}, s{T+2}, 10")
        e(f"v_add_u32 v{V_HL+ps}, s{T+2}, v{V_Z}")
    e(f"s_mul_i32 s{T+2}, s{S_WV}, 5120"); e(f"v_add_u32 v{V_EXW}, s{T+2}, v{V_Z}")
    e(f"s_xor_b32 s{T+2}, s{S_WV}, 2"); e(f"s_mul_i32 s{T+2}, s{T+2}, 5120"); e(f"v_add_u32 v{V_EXR}, s{T+2}, v{V_Z}")
    e(f"s_add_u32 s{T+2}, s{S_WV}, 1"); e(f"s_and_b32 s{T+2}, s{T+2}, 3"); e(f"s_mul_i32 s{T+2}, s{T+2}, 5120")
    e(f"v_add_u32 v{V_EXR+1}, s{T+2}, v{V_Z}")
    e(f"s_mul_i32 s{T+6}, s{S_WV}, 2816"); e(f"s_add_u32 s{T+6}, s{T+6}, {ST_OFF}")
    e(f"v_mul_u32_u24 v{t}, 176, v{t+6}")
    e(f"v_lshl_add_u32 v{t}, v{t+2}, 3, v{t}"); e(f"v_add_u32 v{V_OW}, s{T+6}, v{t}")
    e(f"s_lshl_b32 s{T+4}, s{RB}, 2"); e(f"s_add_u32 s{T+4}, s{T+4}, s{S_WV}"); e(f"s_mul_i32 s{T+4}, s{T+4}, 20480")
    e(f"s_mul_i32 s{T+5}, s{NJ}, 160"); e(f"s_add_u32 s{T+4}, s{T+4}, s{T+5}")
    for k in range(3):
        e(f"v_add_u32 v{t}, {64*k}, v{L}")
        e(f"v_mul_u32_u24 v{t+1}, 205, v{t}"); e(f"v_lshrrev_b32 v{t+1}, 11, v{t+1}")
        e(f"v_mul_u32_u24 v{t+3}, 10, v{t+1}"); e(f"v_sub_u32 v{t+3}, v{t}, v{t+3}"); e(f"v_lshlrev_b32 v{t+3}, 4, v{t+3}")
        e(f"v_mul_u32_u24 v{t+4}, 176, v{t+1}"); e(f"v_add3_u32 v{V_OR+k}, v{t+4}, v{t+3}, s{T+6}")
        e(f"v_mul_u32_u24 v{t+4}, 1280, v{t+1}"); e(f"v_add3_u32 v{V_OG+k}, v{t+4}, v{t+3}, s{T+4}")
    e(f"v_lshrrev_b32 v{t}, 5, v{L}"); e(f"v_lshlrev_b32 v{t}, 30, v{t}")
    e(f"v_add_u32 v{V_OG+2}, v{V_OG+2}, v{t}")
    e(f"s_lshl_b32 s{T+4}, s{RB}, 7"); e(f"s_add_u32 s{T+4}, s{T+4}, {FLAG_OFF}")
    e(f"v_min_u32 v{t}, 23, v{L}"); e(f"v_lshlrev_b32 v{t}, 2, v{t}"); e(f"v_add_u32 v{V_FLG}, s{T+4}, v{t}")


Z_OPS = [("Z", i, u) for i in range(12) for u in range(5)]


def op_parts(op, P):
    k, u, p = op
    pre = []
    if k == "X":
        pre += [f"s_add_u32 m0, s{S_M0X}, {P.XBASE + (u % P.NX) * P.XSZ + p * 4096}"]
        return pre, f"buffer_load_dwordx4 v{V_XO+p}, s[{S_X}:{S_X+3}], s{S_XT+u if u else S_XK} offen lds"
    if k == "W":
        if p == 0 and u > 0:
            pre += [f"s_add_u32 s{S_WK}, s{S_WK}, 98304" if u & 1 else f"s_mul_i32 s{S_WK}, s{S_XT + u//2}, 1536"]
        a, b = P.w_op(u, p)
        return pre + a, b
    if k == "P":
        pre += [f"s_lshl_b32 m0, s{S_M0X}, 1", f"s_add_u32 m0, m0, {PT_OFF + p * 1024}"]
        return pre, f"buffer_load_dwordx4 v{V_PTS}, s[{S_W2}:{S_W2+3}], s{S_PT0+p} offen nt lds"
    if k == "Z":
        if p == 0 and u > 0:
            pre += [f"s_add_u32 s{S_ZK}, s{S_ZK}, 5120", f"s_sub_u32 s{S_T}, s{S_ZK}, 61440",
                    f"s_cmp_eq_u32 s{S_ZK}, s{S_ZEND}", f"s_cselect_b32 s{S_ZK}, s{S_T}, s{S_ZK}"]
        r = 20 * u + 4 * p
        off = f" offset:{1024*p}" if 0 < p < 4 else ""
        return pre, f"buffer_load_dwordx4 a[{r}:{r+3}], v{V_Z + (p == 4)}, s[{S_H}:{S_H+3}], s{S_ZK} offen{off} sc1"
    raise ValueError(op)


class Q:
    def __init__(self, e, ops, P=None):
        self.e, self.ops, self.i, self.armed, self.P = e, list(ops), 0, None, P

    def left(self):
        return len(self.ops) - self.i

    def arm(self):
        pre, ins = op_parts(self.ops[self.i], self.P)
        for s in pre:
            self.e(s)
        self.armed = ins

    def fire(self):
        if "nodma" in self.e.cfg.diag and self.ops[self.i][0] in "XW" and self.i > 16:
            self.armed = "s_nop 0"
        self.e.vmem(self.armed, self.ops[self.i])
        self.armed = None
        self.i += 1

    def issue(self, n=1):
        for _ in range(n):
            if not self.left():
                return
            if self.armed is None:
                self.arm()
            if self.armed.endswith("lds"):
                self.e("s_nop 0")
            self.fire()


def spin_dbg(e, cfg, sfx):
    e(f"v_cmp_eq_u32 vcc, 1, v{V_DBG}")
    e("s_nop 1")
    e(f"s_cbranch_vccnz L_dbg_ok{sfx}")
    e(f"s_mov_b32 s{S_SPIN}, {cfg.spin}")
    e.label(f"L_dbg_spin{sfx}")
    e(f"v_mov_b32 v{V_DBG}, 0")
    e("s_sleep 2")
    e(f"buffer_load_dword v{V_DBG}, v{V_DBG}, s[{S_DBG}:{S_DBG+3}], 0 offen sc1")
    e("s_waitcnt vmcnt(0)")
    e(f"v_cmp_eq_u32 vcc, 1, v{V_DBG}")
    e("s_nop 1")
    e(f"s_cbranch_vccnz L_dbg_ok{sfx}")
    e(f"s_sub_u32 s{S_SPIN}, s{S_SPIN}, 1")
    e(f"s_cmp_lg_u32 s{S_SPIN}, 0")
    e(f"s_cbranch_scc1 L_dbg_spin{sfx}")
    e.label(f"L_dbg_ok{sfx}")


def zflag_load():
    return f"buffer_load_dwordx4 v[{V_ZF}:{V_ZF+3}], v{V_Z}, s[{S_H}:{S_H+3}], s{S_T+1} offen sc1"


def check_zflags(e, cfg, sfx):
    def test():
        e(f"v_and_b32 v{V_ZF}, v{V_ZF}, v{V_ZF+1}")
        e(f"v_and_b32 v{V_ZF+2}, v{V_ZF+2}, v{V_ZF+3}")
        e(f"v_and_b32 v{V_ZF}, v{V_ZF}, v{V_ZF+2}")
        e(f"v_cmp_ne_u32 vcc, 1, v{V_ZF}")
        e("s_nop 1")
        e(f"s_cbranch_vccz L_zf_ok{sfx}")
    test()
    e(f"s_mov_b32 s{S_SPIN}, {cfg.spin}")
    e.label(f"L_zf_spin{sfx}")
    e("s_sleep 2")
    e(zflag_load())
    e("s_waitcnt vmcnt(0)")
    test()
    e(f"s_sub_u32 s{S_SPIN}, s{S_SPIN}, 1")
    e(f"s_cmp_lg_u32 s{S_SPIN}, 0")
    e(f"s_cbranch_scc1 L_zf_spin{sfx}")
    e.label(f"L_zf_ok{sfx}")


def store_one(e, srd_, voff, soff, mask):
    e(f"v_mov_b32 v{V_T+16}, 1")
    if voff is None:
        voff = V_T + 17
        e(f"v_mov_b32 v{voff}, 0")
    e(f"s_mov_b64 exec, {mask}")
    e(f"buffer_store_dword v{V_T+16}, v{voff}, s[{srd_}:{srd_+3}], {soff} offen sc1")
    e("s_mov_b64 exec, -1")


def phase1(e, cfg, P):
    sfx = P.name
    hx = P.NXI // 2
    W = lambda n: [("W", n, p) for p in range(P.NWI)]
    xo = [0, 3, 1, 4, 2, 5] if P.NXI == 6 else [0, 2, 1, 3]
    stream = W(0) + [("X", 0, j) for j in xo] + W(1) + [("X", 1, j) for j in xo]
    for n in range(2, 20):
        kb = (n + 1) // 2
        if n % 2 == 1 and kb < 10:
            stream += [("X", kb, j) for j in range(hx)]
        stream += W(n)
        if n == cfg.p_after:
            stream += [("P", 0, 0), ("P", 0, 1)]
        if n % 2 == 1 and kb < 10:
            stream += [("X", kb, j) for j in range(hx, P.NXI)]
    stream += Z_OPS[:cfg.tail_ops]
    q = Q(e, stream, P)

    def needed(n):
        return max(i for i, (k, u, p) in enumerate(stream) if (k == "X" and u == n // 2) or (k == "W" and u == n)) + 1

    def ahead(n):
        return cfg.A + (cfg.Aend - cfg.A) * max(n - 3, 0) // 14 if n < 17 else cfg.Aend

    def fits(i, freed):
        k, u, p = stream[i]
        if k == "X":
            return u < P.NX or (u - P.NX) * 2 + 2 <= freed
        if k == "W":
            return u < P.NW or (u - P.NW) + 1 <= freed
        return True

    def is_needed(n):
        ops = set(stream[:needed(n)])
        return lambda t: t in ops

    P.early(e)
    first_srds(e, cfg)
    q.issue(needed(0))
    if cfg.wsbase:
        e(f"s_add_u32 s6, s6, {cfg.wsbase << 20}"); e("s_addc_u32 s7, s7, 0")
    srd(e, S_H, 6, (STAMP_OFF + (1 << 20)) if cfg.stamps else WS_REC)
    if P.name == "A":
        e(f"s_or_b32 s{S_T}, s2, s{S_WV}")
        e("s_cbranch_scc1 L_noclear")
        for k in range(4):
            e(f"v_mov_b32 v{V_T+4+k}, 0")
        e(f"v_lshlrev_b32 v{V_T+8}, 4, v{V_LANE}")
        e(f"s_mov_b32 s{S_T}, {FLAG_OFF}"); e(f"s_mov_b32 s{S_T+1}, {ZFLAG_OFF}")
        for k in range(4):
            e(f"buffer_store_dwordx4 v[{V_T+4}:{V_T+7}], v{V_T+8}, s[{S_H}:{S_H+3}], s{S_T} offen offset:{1024*k} sc1")
        e(f"buffer_store_dwordx4 v[{V_T+4}:{V_T+7}], v{V_T+8}, s[{S_H}:{S_H+3}], s{S_T+1} offen sc1")
        e("s_nop 1")
        e.label("L_noclear")
    P.late(e)
    setup_common_late(e, cfg)
    if cfg.exfil == "skew":
        e(f"s_not_b32 s96, s100")
        e(f"v_mov_b32 v{V_T}, s96"); e(f"v_mov_b32 v{V_T+1}, 4")
        e("s_mov_b64 exec, 1")
        e(f"buffer_atomic_umax v{V_T}, v{V_T+1}, s[{S_DBG}:{S_DBG+3}], 0 offen sc1")
        e("s_mov_b64 exec, -1")
    e.stamp("setup done")
    q.issue(cfg.A)
    e.wait(vm=is_needed(0))
    if P.name == "A":
        e(f"s_or_b32 s{S_T}, s2, s{S_WV}")
        e("s_cbranch_scc1 L_noclear2")
        store_one(e, S_DBG, None, "0", "1")
        e.label("L_noclear2")
    e.stamp("first data")
    e("s_barrier")
    for tag, txt in P.reads(0):
        e.ds(txt, tag)
    zok = "noside" in cfg.diag
    freed = 0
    for n in range(20):
        plan = P.read_plan(n)
        mf = P.mfmas(n)
        sg = P.side_gaps if "noside" not in cfg.diag else (99, 99, 99, 99)
        for g, (need, txt) in enumerate(mf):
            if g == P.bar_gap:
                if n < 19:
                    tgt = min(needed(n + 1), len(stream))
                    while q.armed is not None or q.i < tgt:
                        assert fits(q.i, freed)
                        q.issue()
                e.wait(lg=ALL)
            else:
                e.wait(lg=lambda t: t in need)
            e(txt)
            if g == P.bar_gap:
                if n < 19:
                    nd = is_needed(n + 1)
                    if n == cfg.u_zflag:
                        e.wait(vm=lambda t: nd(t) or kind("pts", "dbg")(t))
                    elif n == cfg.u_pt - 1:
                        e.wait(vm=lambda t: nd(t) or kind("P")(t))
                    else:
                        e.wait(vm=nd)
                e("s_barrier")
                freed = n + 1
                if str(n) in cfg.p1stamps.split(","):
                    e.stamp(f"p1 unit {n}")
            if q.armed is not None:
                q.fire()
            for tag, rd in plan.get(g, []):
                e.ds(rd, tag)
            if n == cfg.u_pt and g in sg[:2]:
                c2 = sg.index(g)
                for jj in range(2):
                    r = V_PT + 4 * c2 + 2 * jj
                    e.ds(f"ds_read_b64_tr_b16 v[{r}:{r+1}], v{V_PTA} offset:{jj*4096 + c2*32}", ("pt", c2))
            elif n == cfg.u_pt + 1 and g in sg[:2]:
                c2 = sg.index(g)
                e.wait(lg=lambda t: t == ("pt", c2))
                e.vmem(f"buffer_store_dwordx4 v[{V_PT+4*c2}:{V_PT+4*c2+3}], v{V_Z}, s[{S_H}:{S_H+3}], s{S_PS+c2} offen sc1", ("pts",))
            elif n == cfg.u_pt + 1 and g == sg[2]:
                e(f"v_mov_b32 v{V_DBG}, 0")
            elif n == cfg.u_pt + 1 and g == sg[3]:
                e.vmem(f"buffer_load_dword v{V_DBG}, v{V_DBG}, s[{S_DBG}:{S_DBG+3}], 0 offen sc1", ("dbg",))
            elif n == cfg.u_zflag + (sg[2] < P.bar_gap) and g == sg[2]:
                spin_dbg(e, cfg, sfx)
                e(f"s_cmp_lg_u32 s{S_WV}, 0")
                e(f"s_cbranch_scc1 L_nozflag{sfx}")
                store_one(e, S_H, None, f"s{S_ZFLAG}", "1")
                e.label(f"L_nozflag{sfx}")
            elif n == cfg.u_zpoll and g == sg[2]:
                e(f"s_mov_b32 s{S_T+1}, {ZFLAG_OFF}")
                e.vmem(zflag_load(), ("zf",))
            elif n == cfg.u_zpoll + 2 and g == sg[2]:
                e.wait(vm=kind("zf"))
                check_zflags(e, cfg, sfx)
                zok = True
            nb = n + 2 if g >= P.bar_gap else n + 1
            tgt = min(needed(nb) + ahead(nb), len(stream)) if nb < 20 else len(stream)
            rem = tgt - q.i
            if q.armed is None and rem > 0 and g + 1 < len(mf) and g + 1 != P.bar_gap:
                k = min(max(rem, 5), len(P.dma_gaps))
                if g in P.dma_gaps[:k] and fits(q.i, freed) and (q.ops[q.i][0] != "Z" or zok):
                    q.arm()
        assert q.armed is None
    while q.left():
        q.issue()
    e.stamp("p1 mfma issued")
    e.stamp("p1 mfma issued rt", real=True)


def epilogue1(e, cfg, q):
    e("s_nop 7")
    zs = [int(v) for v in cfg.epi_z.split(",")]
    for n in range(6):
        a = V_ACC + 16 * n
        t = V_T + 8 * (n & 1)
        d = V_FR + 4 * n
        budget = [zs[n]]
        def tick():
            if budget[0] > 0:
                budget[0] -= 1
                q.issue()
        for k in range(4):
            e(f"v_pk_mul_f32 v[{t+2*k}:{t+2*k+1}], v[{a+2*k}:{a+2*k+1}], s[{S_NL2E}:{S_NL2E+1}]")
        tick()
        for k in range(8):
            e(f"v_exp_f32 v{t+k}, v{t+k}")
        for k in range(4):
            e(f"v_pk_add_f32 v[{t+2*k}:{t+2*k+1}], v[{t+2*k}:{t+2*k+1}], 1.0 op_sel_hi:[1,0]")
        tick()
        for k in range(8):
            e(f"v_rcp_f32 v{t+k}, v{t+k}")
            if k == 3:
                tick()
        for k in range(4):
            e(f"v_pk_mul_f32 v[{t+2*k}:{t+2*k+1}], v[{t+2*k}:{t+2*k+1}], v[{a+2*k}:{a+2*k+1}]")
        for k in range(4):
            e(f"v_pk_mul_f32 v[{t+2*k}:{t+2*k+1}], v[{t+2*k}:{t+2*k+1}], v[{a+8+2*k}:{a+8+2*k+1}]")
        for k in range(4):
            e(f"v_cvt_pk_bf16_f32 v{d+k}, v{t+2*k}, v{t+2*k+1}")
        e.vmem(f"buffer_store_dwordx4 v[{d}:{d+3}], v{V_HST}, s[{S_H}:{S_H+3}], s{S_HS+n} offen {cfg.hflags}", ("hst",))
    e.stamp("h stores issued")


def handoff(e, cfg, q):
    q.issue(cfg.pre_z)
    e(f"s_mov_b32 s{S_HK}, s{S_HSV}")
    e(f"s_add_u32 s{S_T+2}, s{S_CI}, 49152")
    for i in range(1, 12):
        e(f"s_add_u32 s{S_HK+i}, s{S_HK+i-1}, 4096")
        e(f"s_cmp_eq_u32 s{S_HK+i}, s{S_T+2}")
        e(f"s_cselect_b32 s{S_HK+i}, s{S_CI}, s{S_HK+i}")
    e.wait(vm=kind("hst"))
    e("s_barrier")
    e.stamp("h stores acked")
    e(f"s_cmp_lg_u32 s{S_WV}, 0")
    e("s_cbranch_scc1 L_nohflag")
    store_one(e, S_H, V_FLO, "0", "15")
    e.label("L_nohflag")
    q.issue(cfg.post_z)
    e(f"s_mov_b32 s{S_SPIN}, {cfg.spin}")
    e.label("L_poll")
    e(f"buffer_load_dword v{V_T}, v{V_FLG}, s[{S_H}:{S_H+3}], 0 offen sc1")
    e("s_waitcnt vmcnt(0)")
    e(f"v_cmp_ne_u32 vcc, 1, v{V_T}")
    e("s_nop 1")
    e("s_cbranch_vccz L_poll_ok")
    e(f"s_sub_u32 s{S_SPIN}, s{S_SPIN}, 1")
    e(f"s_cmp_lg_u32 s{S_SPIN}, 0")
    e("s_cbranch_scc1 L_poll")
    e.label("L_poll_ok")
    e.vm = []
    e.stamp("flags seen")
    e.stamp("flags seen rt", real=True)


def phase2(e, cfg, q):
    NH = cfg.NH
    nload = [0]

    def hload():
        n = nload[0]
        if n >= 48:
            return
        ps, i = divmod(n, 12)
        r = V_HB + 4 * (n % NH)
        e.vmem(f"buffer_load_dwordx4 v[{r}:{r+3}], v{V_HL+ps}, s[{S_H}:{S_H+3}], s{S_HK+i} offen {cfg.hflags}", ("h", n))
        nload[0] += 1

    for k in range(NH - 1):
        hload()
        if q.left() and k >= 2:
            q.issue(1)
    rd_plan = {(7, 1): 0, (7, 3): 1, (8, 1): 2, (8, 3): 3, (9, 1): 4}
    for n in range(48):
        ps, i = divmod(n, 12)
        acc = V_A2 + 20 * (ps & 1)
        oth = V_A2 + 20 * (1 - (ps & 1))
        hb = V_HB + 4 * (n % NH)
        if ps == 0:
            while q.left() and q.ops[q.i][1] <= i:
                q.issue()
        for u in range(5):
            e.wait(vm=lambda t: t == ("h", n) or (t is not None and t[0] == "Z" and (t[1], t[2]) <= (i, u)))
            if i == 0 and ps >= 2:
                e.wait(lg=lambda t: t == ("exr", ps - 1, u))
            r = 20 * i + 4 * u
            c = "0" if (i == 0 and ps < 2) else f"v[{acc+4*u}:{acc+4*u+3}]"
            e(f"v_mfma_f32_16x16x32_bf16 v[{acc+4*u}:{acc+4*u+3}], a[{r}:{r+3}], v[{hb}:{hb+3}], {c}")
            if u == 0:
                hload()
            elif q.left() and u in (1, 3):
                q.issue()
            if ps >= 1 and 1 <= i <= 5 and u == 2:
                w = i - 1
                e.ds(f"ds_write_b128 v{V_EXW}, v[{oth+4*w}:{oth+4*w+3}] offset:{EX_OFF + (ps-1)*20480 + w*1024}", ("exw", ps))
            if ps >= 1 and (i, u) in rd_plan:
                w = rd_plan[(i, u)]
                e.ds(f"ds_read_b128 v[{oth+4*w}:{oth+4*w+3}], v{V_EXR + (ps == 3)} offset:{EX_OFF + (ps-1)*20480 + w*1024}", ("exr", ps, w))
            if ps >= 1 and i == 7 and u == 0:
                e.wait(lg=kind("exw"))
                e("s_barrier")
        if n == 11:
            e.stamp("p2 pass0 done")
    e.stamp("p2 mfma issued")
    e.wait(lg=ALL)
    e("s_nop 7")
    t = V_T
    k1, k0 = V_A2 + 20, V_A2
    for u in range(5):
        for k in range(2):
            e(f"v_pk_add_f32 v[{k1+4*u+2*k}:{k1+4*u+2*k+1}], v[{k1+4*u+2*k}:{k1+4*u+2*k+1}], v[{k0+4*u+2*k}:{k0+4*u+2*k+1}]")
        for k in range(2):
            e(f"v_cvt_pk_bf16_f32 v{t+2*u+k}, v{k1+4*u+2*k}, v{k1+4*u+2*k+1}")
        e.ds(f"ds_write_b64 v{V_OW}, v[{t+2*u}:{t+2*u+1}] offset:{32*u}")
    e.wait(lg=ALL)
    for k in range(3):
        e.ds(f"ds_read_b128 v[{V_HB+4*k}:{V_HB+4*k+3}], v{V_OR+k}", ("o", k))
    for k in range(3):
        e.wait(lg=lambda t: t == ("o", k))
        e.vmem(f"buffer_store_dwordx4 v[{V_HB+4*k}:{V_HB+4*k+3}], v{V_OG+k}, s[{S_OUT}:{S_OUT+3}], 0 offen {cfg.oflags}")


def write_stamps(e, cfg):
    if not cfg.stamps:
        return
    e("s_waitcnt vmcnt(0)")
    e.stamp("end")
    e(f"s_memrealtime s[{S_T+1}:{S_T+2}]")
    e("s_waitcnt lgkmcnt(0)")
    e(f"s_cmp_lg_u32 s{S_WV}, 0")
    e("s_cbranch_scc1 L_end")
    e(f"s_lshl_b32 s{S_T}, s2, 7"); e(f"s_add_u32 s{S_T}, s{S_T}, {STAMP_OFF}")
    e(f"v_mov_b32 v{V_T+1}, 0")
    vals = [f"s{S_STAMP}", f"s{S_T+1}"]
    for name, (i, real) in list(e.slots.items())[2:]:
        e(f"s_sub_u32 s{S_STAMP+2*i}, s{S_STAMP+2*i}, s{S_STAMP if real else S_STAMP + 2}")
        vals.append(f"s{S_STAMP+2*i}")
    for i, v in enumerate(vals):
        e(f"v_mov_b32 v{V_T}, {v}")
        e(f"buffer_store_dword v{V_T}, v{V_T+1}, s[{S_H}:{S_H+3}], s{S_T} offen offset:{4*i}")
        e("s_nop 1")


HEADER = """; SwiGLU FFN: out = (silu(x@w1) * (x@w3)) @ w2, bf16, x[2048,640] w1,w3[640,1536] w2[1536,640]
; @launch grid=(256,1,1) block=(256,1,1) lds=163840
"""


def generate(cfg):
    e = E(cfg)
    e.L += ['.amdgcn_target "amdgcn-amd-amdhsa--gfx950"', ".text", f".globl {KN}", ".p2align 8",
            f".type {KN},@function", f"{KN}:"]
    if cfg.diag_rt:
        e("s_memrealtime s[100:101]")
    entry(e, cfg)
    phase1(e, cfg, PathA(cfg))
    vmA = list(e.vm)
    e.label("L_join")
    q = Q(e, Z_OPS[cfg.tail_ops:])
    if not cfg.diag:
        epilogue1(e, cfg, q)
        handoff(e, cfg, q)
        phase2(e, cfg, q)
    if cfg.diag_rt:
        e(f"s_mov_b32 s97, {cfg.diag_rt}")
        if cfg.exfil == "natural end":
            e("s_waitcnt vmcnt(0)")
            e("s_memrealtime s[98:99]")
        if cfg.exfil == "skew":
            e("s_waitcnt vmcnt(0) lgkmcnt(0)")
            e(f"v_mov_b32 v{V_T}, 4")
            e(f"buffer_load_dword v{V_T+1}, v{V_T}, s[{S_DBG}:{S_DBG+3}], 0 offen sc1")
            e("s_waitcnt vmcnt(0)")
            e(f"v_not_b32 v{V_T+1}, v{V_T+1}")
            e("s_nop 1")
            e(f"v_readfirstlane_b32 s96, v{V_T+1}")
            e("s_nop 3")
            e("s_sub_u32 s98, s100, s96")
            e("s_lshl_b32 s98, s98, 2"); e("s_add_u32 s97, s97, s98")
        elif cfg.exfil:
            e("s_waitcnt lgkmcnt(0)")
            e("s_sub_u32 s98, s98, s100")
            e("s_lshl_b32 s98, s98, 2"); e("s_add_u32 s97, s97, s98")
        e("s_min_u32 s97, s97, 30000")
        e.label("L_diag")
        e(f"s_memrealtime s[{S_T+1}:{S_T+2}]")
        e("s_waitcnt lgkmcnt(0)")
        e(f"s_sub_u32 s{S_T+1}, s{S_T+1}, s100")
        e(f"s_cmp_lt_u32 s{S_T+1}, s97")
        e("s_cbranch_scc1 L_diag")
    write_stamps(e, cfg)
    e("s_endpgm")
    e.label("L_pathB")
    e.vm, e.lg = [], []
    phase1(e, cfg, PathB(cfg))
    assert all(t[0] == "Z" for t in vmA) and all(t[0] == "Z" for t in e.vm) and not e.lg
    e("s_branch L_join")
    e.label("L_end")
    e("s_endpgm")
    e.L += ['.section .rodata,"a"', ".p2align 6", f".amdhsa_kernel {KN}",
            "  .amdhsa_next_free_vgpr 512", "  .amdhsa_next_free_sgpr 102", "  .amdhsa_accum_offset 256",
            "  .amdhsa_group_segment_fixed_size 0", "  .amdhsa_kernarg_size 56", "  .amdhsa_user_sgpr_count 2",
            "  .amdhsa_user_sgpr_kernarg_segment_ptr 1", "  .amdhsa_system_sgpr_workgroup_id_x 1",
            "  .amdhsa_float_denorm_mode_32 3", ".end_amdhsa_kernel"]
    if cfg.stamps:
        print("stamp columns: rt_start, rt_len,", ", ".join(list(e.slots)[2:]))
    return HEADER + "\n".join(e.L) + "\n"


def main():
    ap = argparse.ArgumentParser()
    ap.add_argument("-o", default="standalone__glu_gated_swiglu__prompt.s")
    ap.add_argument("opts", nargs="*")
    a = ap.parse_args()
    cfg = Cfg()
    for o in a.opts:
        k, v = o.split("=", 1)
        cur = getattr(cfg, k)
        if isinstance(cur, bool):
            v = v not in ("0", "False", "false")
        elif isinstance(cur, int):
            v = int(v)
        setattr(cfg, k, v)
    open(a.o, "w").write(generate(cfg))


if __name__ == "__main__":
    main()
```

```python
import argparse

KN = "standalone__glu_gated_swiglu__prompt_kernel"
STAMP_OFF = 128 << 20
H_BYTES = 2048 * 1536 * 2
FLAG_OFF = H_BYTES
ZFLAG_OFF = FLAG_OFF + 4096
W2T_OFF = FLAG_OFF + 8192
WS_REC = W2T_OFF + 1966080


class Cfg:
    stamps = False
    A = 7
    Aend = 7
    NWA = 6
    NWB = 5
    rot1 = 1
    rot2 = 0
    rot2mask = 1
    korder = "skip"
    rot2rb = 2
    barA = 9
    map2 = "8x4"
    NH = 8
    tail_ops = 7
    epi_z = "0,0,0,1,2,2"
    pre_z = 10
    post_z = 20
    p_after = 2
    u_pt = 4
    u_zflag = 8
    u_zpoll = 12
    hflags = "sc1"
    oflags = ""
    spin = 60000
    codepf = True
    wsbase = 0
    diag_rt = 0
    exfil = ""
    diag = ""
    p1stamps = "2,10"


class E:
    def __init__(self, cfg):
        self.L, self.vm, self.lg, self.cfg = [], [], [], cfg
        self.slots = {}

    def __call__(self, s):
        self.L.append("    " + s)

    def label(self, s):
        self.L.append(s + ":")

    def vmem(self, s, tag=None):
        self(s)
        self.vm.append(tag)

    def ds(self, s, tag=None):
        self(s)
        self.lg.append(tag)

    @staticmethod
    def _last(q, pred):
        last = -1
        for i, t in enumerate(q):
            if pred(t):
                last = i
        return last

    def wait(self, vm=None, lg=None):
        parts = []
        if vm is not None:
            last = self._last(self.vm, vm)
            if last >= 0:
                n = len(self.vm) - 1 - last
                if n > 63:
                    n, last = 63, len(self.vm) - 64
                parts.append(f"vmcnt({n})")
                self.vm = self.vm[last + 1:]
        if lg is not None:
            last = self._last(self.lg, lg)
            if last >= 0:
                n = len(self.lg) - 1 - last
                if n > 15:
                    n, last = 15, len(self.lg) - 16
                parts.append(f"lgkmcnt({n})")
                self.lg = self.lg[last + 1:]
        if parts:
            self("s_waitcnt " + " ".join(parts))

    def stamp(self, name, real=False):
        if self.cfg.exfil == name and not real:
            self("s_memrealtime s[98:99]")
        if not self.cfg.stamps:
            return
        if self.cfg.diag and name in ("setup done",):
            return
        if name.startswith("dbg") or name.startswith("zf"):
            return
        if name not in self.slots:
            self.slots[name] = (len(self.slots), real)
        r = S_STAMP + 2 * self.slots[name][0]
        assert r + 1 <= 101, name
        self(f"{'s_memrealtime' if real else 's_memtime'} s[{r}:{r+1}]   ; stamp {name}")


ALL = lambda t: True
def kind(*ks):
    return lambda t: t is not None and t[0] in ks

S_PT0, S_PT1 = 3, 4
S_SPIN = 5
S_ZFLAG = 6
S_X, S_W, S_W2, S_H, S_OUT, S_DBG = 8, 12, 16, 20, 24, 28
S_WV = 32
S_CI, S_PHI = 33, 34
S_XK, S_WK = 35, 36
S_M0X, S_M0W = 37, 38
S_ZK, S_ZEND = 39, 40
S_HS = 41
S_PS, S_PG = 47, 48
S_T = 49
S_NL2E = 58
S_HK = 60
S_XT = 60
S_HSV = 70
S_STAMP = 72
KA = 60

V_LANE = 1
V_XO = 2
V_WO = 8
V_XA = 10
V_WA = 14
V_HST = 17
V_PTS = 18
V_PTA = 19
V_Z = 20
V_HL = 22
V_EXW = 26
V_EXR = 27
V_OW = 29
V_OR = 30
V_OG = 33
V_DBG = 36
V_FLG = 37
V_FLO = 38
V_ZF = 40
V_T = 44
V_FR = 64
V_PT = 144
V_ACC = 160
V_HB = 64
V_A2 = 112

PT_OFF = 131072
EX_OFF = 0
ST_OFF = 61440
OOB = 0x40000000


def srd(e, base, ptr, size):
    e(f"s_mov_b32 s{base}, s{ptr}")
    e(f"s_and_b32 s{base+1}, s{ptr+1}, 0xffff")
    e(f"s_mov_b32 s{base+2}, {size}")
    e(f"s_mov_b32 s{base+3}, 0x20000")


def mod_sub(e, r, n, tmp, times):
    for _ in range(times):
        e(f"s_sub_u32 s{tmp}, s{r}, {n}")
        e(f"s_cmp_ge_u32 s{r}, {n}")
        e(f"s_cselect_b32 s{r}, s{tmp}, s{r}")


def entry(e, cfg):
    T = S_T; L = V_LANE; t = V_T
    e("s_cmp_ge_u32 s2, 256")
    e("s_cbranch_scc1 L_end")
    e(f"s_load_dwordx8 s[{KA}:{KA+7}], s[0:1], 0")
    e(f"s_load_dwordx4 s[{KA+8}:{KA+11}], s[0:1], 32")
    e(f"s_load_dwordx2 s[6:7], s[0:1], 48")
    e.stamp("start rt", real=True)
    e.stamp("start")
    if cfg.codepf:
        e("s_cmp_ge_u32 s2, 16")
        e("s_cbranch_scc1 L_pfskip")
        e(f"s_getpc_b64 s[{T+1}:{T+2}]")
        e.label("L_pfbase")
        e(f"v_min_u32 v{t+8}, (L_end - L_pfbase) / 128, v0")
        e(f"v_lshlrev_b32 v{t+8}, 7, v{t+8}")
        e(f"v_mov_b32 v{t+10}, s{T+2}")
        e(f"v_add_co_u32 v{t+8}, vcc, s{T+1}, v{t+8}")
        e("s_nop 1")
        e(f"v_addc_co_u32 v{t+9}, vcc, 0, v{t+10}, vcc")
        e(f"global_load_dword v{t+19}, v[{t+8}:{t+9}], off")
        e.label("L_pfskip")
    e(f"v_lshrrev_b32 v{t}, 6, v0")
    e(f"v_and_b32 v{L}, 63, v0")
    e(f"v_readfirstlane_b32 s{S_WV}, v{t}")
    e(f"s_and_b32 s{T}, s2, 1")
    e(f"s_bfe_u32 s{T+1}, s2, 0x20001")
    e(f"s_lshr_b32 s{T+2}, s2, 3")
    e(f"v_lshrrev_b32 v{t+3}, 3, v{L}")
    e(f"v_and_b32 v{t+2}, 7, v{L}")
    e(f"s_and_b32 s{T+4}, s{S_WV}, 1")
    e(f"s_lshr_b32 s{T+5}, s{S_WV}, 1")
    e(f"s_cmp_ge_u32 s{T+2}, 30")
    e("s_cbranch_scc1 L_pathB")


def finish_phi(e, cfg):
    mod_sub(e, S_PHI, 10, S_T + 6, 1)
    if cfg.rot1 == 0:
        e(f"s_mov_b32 s{S_PHI}, 0")
    if cfg.rot1 == 2:
        e(f"s_and_b32 s{S_PHI}, s{S_PHI}, 14")
    e(f"s_lshl_b32 s{S_XK}, s{S_PHI}, 7")
    e(f"s_mul_i32 s{S_WK}, s{S_PHI}, 196608")


def x_dma_offsets(e, row0, n):
    T = S_T; L = V_LANE; t = V_T
    e(f"s_lshl_b32 s{T+6}, s{T+4}, 2")
    e(f"v_lshrrev_b32 v{t}, 4, v{L}")
    e(f"v_add_u32 v{t}, s{T+6}, v{t}")
    e(f"v_xor_b32 v{t}, v{t}, v{t+2}")
    e(f"s_lshl_b32 s{T+6}, s{S_WV}, 3"); e(f"s_add_u32 s{T+6}, s{T+6}, s{row0}")
    e(f"v_add_u32 v{t+1}, s{T+6}, v{t+3}")
    e(f"v_mul_u32_u24 v{t+1}, 1280, v{t+1}")
    e(f"v_lshl_add_u32 v{V_XO}, v{t}, 4, v{t+1}")
    for j in range(1, n):
        e(f"v_add_u32 v{V_XO+j}, {40960*j}, v{V_XO}")
    e(f"s_lshl_b32 s{S_M0X}, s{S_WV}, 10")


def first_srds(e, cfg):
    e("s_waitcnt lgkmcnt(0)")
    e(f"s_bitcmp1_b32 s{S_WV}, 0")
    e(f"s_cselect_b32 s{S_W}, s{KA+4}, s{KA+2}")
    e(f"s_cselect_b32 s{S_W+1}, s{KA+5}, s{KA+3}")
    e(f"s_and_b32 s{S_W+1}, s{S_W+1}, 0xffff")
    e(f"s_mov_b32 s{S_W+2}, 1966080")
    e(f"s_mov_b32 s{S_W+3}, 0x20000")
    srd(e, S_X, KA, 2621440)


class PathA:
    name = "A"; XSZ = 24576; XBASE = 0; WBASE = 73728; WSZ = 8192; NXI = 6; NWI = 2

    def __init__(self, cfg):
        self.cfg, self.NX, self.NW = cfg, 3, cfg.NWA
        self.bar_gap = cfg.barA
        assert cfg.barA <= 9
        assert self.WBASE + self.NW * self.WSZ <= PT_OFF

    def early(self, e):
        T = S_T; L = V_LANE; t = V_T
        e(f"s_mul_i32 s{T+3}, s{T+2}, 52"); e(f"s_lshr_b32 s{T+3}, s{T+3}, 8")
        e(f"s_mul_i32 s{T+6}, s{T+3}, 5"); e(f"s_sub_u32 s{T+2}, s{T+2}, s{T+6}")
        e(f"s_add_u32 s{T+6}, s{T+6}, s{T+1}"); e(f"s_mul_i32 s{T+6}, s{T+6}, 86"); e(f"s_lshr_b32 s{T+6}, s{T+6}, 8")
        e(f"s_lshl_b32 s{S_PHI}, s{T+2}, 1"); e(f"s_add_u32 s{S_PHI}, s{S_PHI}, s{T}"); e(f"s_add_u32 s{S_PHI}, s{S_PHI}, s{T+6}")
        e(f"s_mul_i32 s{T+7}, s{T}, 5")
        e(f"s_add_u32 s{T+7}, s{T+7}, s{T+2}")
        e(f"s_mul_i32 s{S_CI}, s{T+1}, 6"); e(f"s_add_u32 s{S_CI}, s{S_CI}, s{T+3}")
        finish_phi(e, self.cfg)
        e(f"s_lshl_b32 s{T+6}, s{T+5}, 4")
        e(f"v_add_u32 v{t}, s{T+6}, v{t+3}")
        e(f"v_mul_u32_u24 v{t}, 3072, v{t}")
        e(f"v_bfe_u32 v{t+1}, v{L}, 4, 1")
        e(f"v_lshlrev_b32 v{t+1}, 1, v{t+1}")
        e(f"v_xor_b32 v{t+1}, v{t+1}, v{t+2}")
        e(f"s_lshl_b32 s{T+6}, s{S_CI}, 7")
        e(f"v_lshl_add_u32 v{t}, v{t+1}, 4, v{t}")
        e(f"v_add_u32 v{V_WO}, s{T+6}, v{t}")
        e(f"v_xor_b32 v{V_WO+1}, 64, v{V_WO}")
        e(f"v_add_u32 v{V_WO+1}, {8*3072}, v{V_WO+1}")
        e(f"s_mul_i32 s{T+8}, s{T+7}, 192")
        x_dma_offsets(e, T + 8, 6)
        e(f"s_lshl_b32 s{S_M0W}, s{T+4}, 12"); e(f"s_lshl_b32 s{T+6}, s{T+5}, 11"); e(f"s_add_u32 s{S_M0W}, s{S_M0W}, s{T+6}")

    def late(self, e):
        T = S_T; L = V_LANE; t = V_T
        e(f"s_and_b32 s{T}, s{S_WV}, 1")
        e(f"s_lshr_b32 s{T+1}, s{S_WV}, 1")
        e(f"v_and_b32 v{t}, 15, v{L}")
        e(f"s_mul_i32 s{T+2}, s{T+1}, 96")
        e(f"v_add_u32 v{t}, s{T+2}, v{t}")
        e(f"v_lshlrev_b32 v{t}, 7, v{t}")
        e(f"v_bfe_u32 v{t+1}, v{L}, 1, 3")
        e(f"v_lshrrev_b32 v{t+2}, 4, v{L}")
        e(f"v_xor_b32 v{t+1}, v{t+1}, v{t+2}")
        e(f"v_lshl_add_u32 v{V_XA}, v{t+1}, 4, v{t}")
        e(f"v_xor_b32 v{V_XA+1}, 64, v{V_XA}")
        e(f"v_bfe_u32 v{t+3}, v{L}, 2, 2")
        e(f"v_lshl_add_u32 v{t}, v{t+2}, 3, v{t+3}")
        e(f"v_lshlrev_b32 v{t}, 7, v{t}")
        e(f"v_and_b32 v{t+4}, 3, v{L}")
        e(f"v_lshl_add_u32 v{t}, v{t+4}, 3, v{t}")
        e(f"v_bfe_u32 v{t+4}, v{L}, 3, 2")
        e(f"s_lshl_b32 s{T+2}, s{T}, 1")
        e(f"v_xor_b32 v{t+4}, s{T+2}, v{t+4}")
        e(f"v_lshl_add_u32 v{t}, v{t+4}, 5, v{t}")
        e(f"v_add_u32 v{V_WA}, {self.WBASE}, v{t}")
        e(f"v_xor_b32 v{V_WA+1}, 32, v{V_WA}")
        e(f"v_lshlrev_b32 v{V_HST}, 4, v{L}")
        e(f"s_lshl_b32 s{T+2}, s{S_CI}, 1"); e(f"s_add_u32 s{T+2}, s{T+2}, s{T}"); e(f"s_lshl_b32 s{T+2}, s{T+2}, 12")
        e(f"s_lshl_b32 s{T+3}, s{T+7}, 1"); e(f"s_add_u32 s{T+3}, s{T+3}, s{T+1}"); e(f"s_mul_i32 s{T+3}, s{T+3}, 6")
        for tb in range(6):
            e(f"s_add_u32 s{T+4}, s{T+3}, {tb}")
            e(f"s_lshr_b32 s{T+5}, s{T+4}, 2"); e(f"s_mul_i32 s{T+5}, s{T+5}, 196608")
            e(f"s_and_b32 s{T+4}, s{T+4}, 3"); e(f"s_lshl_b32 s{T+4}, s{T+4}, 10")
            e(f"s_add_u32 s{T+4}, s{T+4}, s{T+5}"); e(f"s_add_u32 s{S_HS+tb}, s{T+4}, s{T+2}")
        e(f"s_mul_i32 s{T+2}, s{T+7}, 384"); e(f"s_lshl_b32 s{T+3}, s{S_CI}, 2"); e(f"s_add_u32 s{T+2}, s{T+2}, s{T+3}")
        e(f"s_add_u32 s{T+2}, s{T+2}, {FLAG_OFF}")
        e(f"v_min_u32 v{t}, 2, v{L}")
        e(f"v_lshlrev_b32 v{t}, 7, v{t}")
        e(f"v_add_u32 v{V_FLO}, s{T+2}, v{t}")

    def w_op(self, u, p):
        pre = [f"s_add_u32 m0, s{S_M0W}, {self.WBASE + (u % self.NW) * self.WSZ + p * 1024}"]
        return pre, f"buffer_load_dwordx4 v{V_WO+p}, s[{S_W}:{S_W+3}], s{S_WK} offen lds"

    def reads(self, n):
        st = V_FR + 40 * (n & 1)
        xs, ws = (n // 2) % self.NX, n % self.NW
        def x(tb):
            r = st + 16 + 4 * tb
            return (("x", n, tb), f"ds_read_b128 v[{r}:{r+3}], v{V_XA + (n & 1)} offset:{xs*self.XSZ + tb*2048}")
        def w(k, jj):
            m, fb = divmod(k, 2)
            r = st + 4 * k + 2 * jj
            return (("w", n, k), f"ds_read_b64_tr_b16 v[{r}:{r+1}], v{V_WA+fb} offset:{ws*self.WSZ + m*4096 + jj*512}")
        return [x(0), w(0, 0), w(0, 1), w(1, 0), w(1, 1), w(2, 0), w(2, 1), w(3, 0), w(3, 1), x(1), x(2), x(3), x(4), x(5)]

    def mfmas(self, n):
        st = V_FR + 40 * (n & 1)
        out = []
        for tb in range(6):
            for k in range(4):
                a = V_ACC + 16 * tb + 4 * k
                c = "0" if n == 0 else f"v[{a}:{a+3}]"
                out.append(([("x", n, tb), ("w", n, k)],
                            f"v_mfma_f32_16x16x32_bf16 v[{a}:{a+3}], v[{st+4*k}:{st+4*k+3}], v[{st+16+4*tb}:{st+16+4*tb+3}], {c}"))
        return out

    def read_plan(self, n):
        r = self.reads(n + 1) if n < 19 else []
        return {g + 1 + self.bar_gap: [x] for g, x in enumerate(r)}

    dma_gaps = [2, 6, 11, 15, 19, 4, 13, 17, 21, 0]
    side_gaps = (1, 3, 5, 7)


class PathB:
    name = "B"; XSZ = 16384; XBASE = 0; WBASE = 49152; WSZ = 12288; NXI = 4; NWI = 3
    order = [(0, 0), (1, 0), (0, 1), (1, 1), (2, 0), (2, 1)]

    def __init__(self, cfg):
        self.cfg, self.NX, self.NW = cfg, 3, cfg.NWB
        assert self.WBASE + self.NW * self.WSZ <= PT_OFF

    def early(self, e):
        T = S_T; L = V_LANE; t = V_T
        e(f"s_lshl_b32 s{S_CI}, s{T+1}, 1"); e(f"s_add_u32 s{S_CI}, s{S_CI}, s{T}"); e(f"s_lshl_b32 s{S_CI}, s{S_CI}, 1")
        e(f"s_add_u32 s{S_CI}, s{S_CI}, s{T+2}"); e(f"s_sub_u32 s{S_CI}, s{S_CI}, 30")
        e(f"s_mul_i32 s{S_PHI}, s{S_CI}, 5"); e(f"s_lshr_b32 s{S_PHI}, s{S_PHI}, 3")
        finish_phi(e, self.cfg)
        e(f"v_lshrrev_b32 v{t}, 2, v{L}")
        e(f"s_lshl_b32 s{T+6}, s{T+5}, 4")
        e(f"v_add_u32 v{t}, s{T+6}, v{t}")
        e(f"v_mul_u32_u24 v{t}, 3072, v{t}")
        e(f"v_and_b32 v{t+1}, 3, v{L}")
        e(f"v_xor_b32 v{t+1}, s{T+4}, v{t+1}")
        e(f"v_lshl_add_u32 v{t}, v{t+1}, 4, v{t}")
        e(f"s_mul_i32 s{T+6}, s{S_CI}, 192")
        e(f"v_add_u32 v{V_WO}, s{T+6}, v{t}")
        e(f"s_mov_b32 s{T+8}, 1920")
        x_dma_offsets(e, T + 8, 4)
        e(f"s_mul_i32 s{S_M0W}, s{T+4}, 6144"); e(f"s_lshl_b32 s{T+6}, s{T+5}, 10"); e(f"s_add_u32 s{S_M0W}, s{S_M0W}, s{T+6}")

    def late(self, e):
        T = S_T; L = V_LANE; t = V_T
        e(f"s_and_b32 s{T}, s{S_WV}, 1")
        e(f"s_lshr_b32 s{T+1}, s{S_WV}, 1")
        e(f"v_and_b32 v{t}, 31, v{L}")
        e(f"s_lshl_b32 s{T+2}, s{T+1}, 6")
        e(f"v_add_u32 v{t}, s{T+2}, v{t}")
        e(f"v_lshlrev_b32 v{t}, 7, v{t}")
        e(f"v_bfe_u32 v{t+1}, v{L}, 1, 3")
        e(f"v_lshrrev_b32 v{t+2}, 5, v{L}")
        e(f"v_xor_b32 v{t+1}, v{t+1}, v{t+2}")
        for s4 in range(4):
            e(f"v_xor_b32 v{t+3}, {2*s4}, v{t+1}")
            e(f"v_lshl_add_u32 v{V_XA+s4}, v{t+3}, 4, v{t}")
        e(f"v_bfe_u32 v{t}, v{L}, 4, 1")
        e(f"v_mul_u32_u24 v{t+1}, 6144, v{t}")
        e(f"v_lshl_add_u32 v{t+1}, v{t+2}, 9, v{t+1}")
        e(f"v_bfe_u32 v{t+4}, v{L}, 2, 2")
        e(f"v_lshl_add_u32 v{t+1}, v{t+4}, 6, v{t+1}")
        e(f"v_and_b32 v{t+4}, 1, v{L}")
        e(f"v_lshl_add_u32 v{t+1}, v{t+4}, 3, v{t+1}")
        e(f"v_bfe_u32 v{t+4}, v{L}, 1, 1")
        e(f"v_lshl_add_u32 v{t+1}, v{t+4}, 5, v{t+1}")
        e(f"s_mul_i32 s{T+2}, s{T}, 3")
        e(f"s_mul_i32 s{T+5}, s{S_CI}, 12288")
        e(f"s_add_u32 s{T+6}, s{T+1}, 30"); e(f"s_mul_i32 s{T+6}, s{T+6}, 196608"); e(f"s_add_u32 s{T+5}, s{T+5}, s{T+6}")
        for j in range(3):
            e(f"s_add_u32 s{T+3}, s{T+2}, {j}")
            e(f"s_and_b32 s{T+4}, s{T+3}, 1")
            e(f"s_lshr_b32 s{T+3}, s{T+3}, 1")
            e(f"v_xor_b32 v{t+3}, s{T+4}, v{t}")
            e(f"v_lshl_add_u32 v{t+3}, v{t+3}, 4, v{t+1}")
            e(f"s_lshl_b32 s{T+7}, s{T+3}, 11"); e(f"s_add_u32 s{T+7}, s{T+7}, {self.WBASE}")
            e(f"v_add_u32 v{V_WA+j}, s{T+7}, v{t+3}")
            e(f"s_lshl_b32 s{T+3}, s{T+3}, 12"); e(f"s_lshl_b32 s{T+4}, s{T+4}, 9")
            e(f"s_add_u32 s{T+3}, s{T+3}, s{T+4}"); e(f"s_add_u32 s{T+3}, s{T+3}, s{T+5}")
            for n, (jn, tb) in enumerate(self.order):
                if jn == j:
                    e(f"s_add_u32 s{S_HS+n}, s{T+3}, {tb*2048}")
        e(f"v_lshlrev_b32 v{t+1}, 10, v{t}")
        e(f"v_lshl_add_u32 v{t+1}, v{t+2}, 8, v{t+1}")
        e(f"v_and_b32 v{t+3}, 15, v{L}")
        e(f"v_lshl_add_u32 v{V_HST}, v{t+3}, 4, v{t+1}")
        e(f"s_lshl_b32 s{T+2}, s{S_CI}, 2"); e(f"s_add_u32 s{T+2}, s{T+2}, {FLAG_OFF + 30*128}")
        e(f"s_cmp_lt_u32 s{S_CI}, 8"); e(f"s_cselect_b32 s{T+3}, 32, 0")
        e(f"v_and_b32 v{t}, 1, v{L}"); e(f"v_lshlrev_b32 v{t}, 7, v{t}")
        e(f"v_and_b32 v{t+1}, 2, v{L}"); e(f"v_mul_u32_u24 v{t+1}, s{T+3}, v{t+1}")
        e(f"v_add3_u32 v{V_FLO}, v{t}, v{t+1}, s{T+2}")

    def w_op(self, u, p):
        pre = [f"s_add_u32 m0, s{S_M0W}, {self.WBASE + (u % self.NW) * self.WSZ + p * 2048 - p * 64}"]
        off = f" offset:{64*p}" if p else ""
        return pre, f"buffer_load_dwordx4 v{V_WO}, s[{S_W}:{S_W+3}], s{S_WK} offen{off} lds"

    def reads16(self, s):
        st = V_FR + 20 * (s & 1)
        xs, ws = (s // 4) % self.NX, (s // 2) % self.NW
        def x(tb):
            return (("x", s, tb), f"ds_read_b128 v[{st+4*tb}:{st+4*tb+3}], v{V_XA + s % 4} offset:{xs*self.XSZ + tb*4096}")
        def w(j, jj):
            r = st + 8 + 4 * j + 2 * jj
            return (("w", s, j), f"ds_read_b64_tr_b16 v[{r}:{r+1}], v{V_WA+j} offset:{ws*self.WSZ + (s&1)*1024 + jj*256}")
        return [x(0), w(0, 0), w(0, 1), w(1, 0), w(1, 1), x(1), w(2, 0), w(2, 1)]

    def reads(self, n):
        return self.reads16(2 * n)

    def mfmas(self, n):
        out = []
        for s in (2 * n, 2 * n + 1):
            st = V_FR + 20 * (s & 1)
            for i, (j, tb) in enumerate(self.order):
                a = V_ACC + 16 * i
                c = "0" if s == 0 else f"v[{a}:{a+15}]"
                out.append(([("x", s, tb), ("w", s, j)],
                            f"v_mfma_f32_32x32x16_bf16 v[{a}:{a+15}], v[{st+8+4*j}:{st+8+4*j+3}], v[{st+4*tb}:{st+4*tb+3}], {c}"))
        return out

    def read_plan(self, n):
        plan = {}
        for half, s in ((0, 2 * n + 1), (6, 2 * n + 2)):
            r = self.reads16(s) if s < 40 else []
            for i in range(len(r) // 2):
                plan[half + i] = r[2 * i:2 * i + 2]
        return plan

    dma_gaps = [7, 9, 1, 3, 10, 4, 8, 2]
    side_gaps = (4, 5, 10, 11)
    bar_gap = 6


def setup_common_late(e, cfg):
    T = S_T; L = V_LANE; t = V_T
    srd(e, S_W2, KA + 6, 1966080)
    srd(e, S_OUT, KA + 8, 2621440)
    srd(e, S_DBG, KA + 10, 256)
    e(f"s_mov_b32 s{T+2}, s2")
    mod_sub(e, T + 2, 240, T + 3, 1)
    e(f"s_mul_i32 s{S_PS}, s{T+2}, 205"); e(f"s_lshr_b32 s{S_PS}, s{S_PS}, 10")
    e(f"s_mul_i32 s{T+3}, s{S_PS}, 5"); e(f"s_sub_u32 s{S_PG}, s{T+2}, s{T+3}")
    e(f"s_mul_i32 s{S_PT0}, s{S_PS}, 40960"); e(f"s_lshl_b32 s{T+3}, s{S_PG}, 8"); e(f"s_add_u32 s{S_PT0}, s{S_PT0}, s{T+3}")
    e(f"s_mul_i32 s{T+3}, s{S_WV}, 10240"); e(f"s_add_u32 s{S_PT0}, s{S_PT0}, s{T+3}")
    e(f"s_add_u32 s{S_PT1}, s{S_PT0}, 5120")
    e(f"v_lshrrev_b32 v{t+2}, 4, v{L}")
    e(f"v_and_b32 v{t+6}, 15, v{L}")
    e(f"v_mul_u32_u24 v{t}, 1280, v{t+2}")
    e(f"v_lshl_add_u32 v{V_PTS}, v{t+6}, 4, v{t}")
    e(f"v_lshrrev_b32 v{t}, 2, v{L}"); e(f"v_lshlrev_b32 v{t}, 8, v{t}")
    e(f"v_and_b32 v{t+1}, 3, v{L}"); e(f"v_lshl_add_u32 v{t}, v{t+1}, 3, v{t}")
    e(f"s_lshl_b32 s{T+2}, s{S_WV}, 6"); e(f"s_add_u32 s{T+2}, s{T+2}, {PT_OFF}")
    e(f"v_add_u32 v{V_PTA}, s{T+2}, v{t}")
    e(f"s_lshl_b32 s{T+2}, s{S_PG}, 2"); e(f"s_add_u32 s{T+2}, s{T+2}, s{S_WV}"); e(f"s_lshl_b32 s{T+2}, s{T+2}, 1")
    e(f"s_mul_i32 s{T+3}, s{S_PS}, 5120"); e(f"s_add_u32 s{T+3}, s{T+3}, {W2T_OFF}")
    for c in range(2):
        e(f"s_add_u32 s{T+4}, s{T+2}, {c}")
        e(f"s_mul_i32 s{T+5}, s{T+4}, 52"); e(f"s_lshr_b32 s{T+5}, s{T+5}, 8"); e(f"s_mul_i32 s{T+5}, s{T+5}, {245760-5120}")
        e(f"s_lshl_b32 s{T+4}, s{T+4}, 10"); e(f"s_add_u32 s{T+4}, s{T+4}, s{T+5}"); e(f"s_add_u32 s{S_PS+c}, s{T+4}, s{T+3}")
    e(f"s_mov_b32 s{S_XT}, s{S_XK}")
    for k in range(1, 10):
        if cfg.korder == "skip":
            e(f"s_cmp_gt_u32 s{S_XK}, {128*(k-1)}")
            e(f"s_cselect_b32 s{S_XT+k}, {128*(k-1)}, {128*k}" if k == 1 else f"s_cselect_b32 s{S_XT+k}, s{T+8}, s{T+7}")
            e(f"s_mov_b32 s{T+8}, {128*k}"); e(f"s_mov_b32 s{T+7}, {128*(k+1)}")
        else:
            e(f"s_add_u32 s{S_XT+k}, s{S_XT+k-1}, 128"); e(f"s_cmp_eq_u32 s{S_XT+k}, 1280"); e(f"s_cselect_b32 s{S_XT+k}, 0, s{S_XT+k}")
    e(f"s_lshl_b32 s{S_ZFLAG}, s2, 2"); e(f"s_add_u32 s{S_ZFLAG}, s{S_ZFLAG}, {ZFLAG_OFF}")
    e(f"s_mov_b32 s{S_NL2E}, 0xbfb8aa3b"); e(f"s_mov_b32 s{S_NL2E+1}, 0xbfb8aa3b")
    RB, NJ = T + 7, T + 8
    e(f"s_and_b32 s{T}, s2, 7"); e(f"s_lshr_b32 s{T+1}, s2, 3")
    if cfg.map2 == "4x8":
        e(f"s_lshl_b32 s{RB}, s{T}, 2"); e(f"s_lshr_b32 s{T+2}, s{T+1}, 3"); e(f"s_add_u32 s{RB}, s{RB}, s{T+2}")
        e(f"s_and_b32 s{NJ}, s{T+1}, 7")
        e(f"s_mul_i32 s{T+2}, s{T+2}, 3")
        if cfg.rot2rb == 2:
            e(f"s_bfe_u32 s{T+2}, s{T+1}, 0x10003"); e(f"s_mul_i32 s{T+2}, s{T+2}, 6")
    else:
        e(f"s_lshr_b32 s{RB}, s{T}, 1"); e(f"s_lshl_b32 s{RB}, s{RB}, 3"); e(f"s_lshr_b32 s{T+2}, s{T+1}, 2"); e(f"s_add_u32 s{RB}, s{RB}, s{T+2}")
        e(f"s_and_b32 s{NJ}, s{T}, 1"); e(f"s_lshl_b32 s{NJ}, s{NJ}, 2"); e(f"s_and_b32 s{T+3}, s{T+1}, 3"); e(f"s_add_u32 s{NJ}, s{NJ}, s{T+3}")
        e(f"s_mul_i32 s{T+2}, s{T+2}, 3"); e(f"s_lshr_b32 s{T+2}, s{T+2}, 1")
        if cfg.rot2rb == 2:
            e(f"s_bfe_u32 s{T+2}, s{T+1}, 0x10002"); e(f"s_mul_i32 s{T+2}, s{T+2}, 6")
    e(f"s_and_b32 s{T+3}, s{NJ}, {cfg.rot2mask}"); e(f"s_mul_i32 s{T+3}, s{T+3}, {cfg.rot2}")
    if cfg.rot2rb:
        e(f"s_add_u32 s{T+3}, s{T+3}, s{T+2}")
    mod_sub(e, T + 3, 12, T + 2, 1)
    e(f"s_mul_i32 s{T+4}, s{S_WV}, 12")
    e(f"s_mul_i32 s{T+5}, s{NJ}, 48"); e(f"s_add_u32 s{T+5}, s{T+5}, s{T+4}")
    e(f"s_mul_i32 s{S_ZEND}, s{T+5}, 5120"); e(f"s_add_u32 s{S_ZEND}, s{S_ZEND}, {W2T_OFF}")
    e(f"s_mul_i32 s{T+6}, s{T+3}, 5120"); e(f"s_add_u32 s{S_ZK}, s{S_ZEND}, s{T+6}")
    e(f"s_add_u32 s{S_ZEND}, s{S_ZEND}, 61440")
    e(f"s_mul_i32 s{T+5}, s{RB}, 48"); e(f"s_add_u32 s{T+5}, s{T+5}, s{T+4}"); e(f"s_lshl_b32 s{T+5}, s{T+5}, 12")
    e(f"s_mov_b32 s{S_CI}, s{T+5}")
    e(f"s_lshl_b32 s{T+3}, s{T+3}, 12"); e(f"s_add_u32 s{S_HSV}, s{T+5}, s{T+3}")
    e(f"v_lshlrev_b32 v{V_Z}, 4, v{L}")
    e(f"v_add_u32 v{V_Z+1}, 4096, v{V_Z}")
    for ps in range(4):
        e(f"s_add_u32 s{T+2}, s{S_WV}, {ps+1}"); e(f"s_and_b32 s{T+2}, s{T+2}, 3"); e(f"s_lshl_b32 s{T+2}, s{T+2}, 10")
        e(f"v_add_u32 v{V_HL+ps}, s{T+2}, v{V_Z}")
    e(f"s_mul_i32 s{T+2}, s{S_WV}, 5120"); e(f"v_add_u32 v{V_EXW}, s{T+2}, v{V_Z}")
    e(f"s_xor_b32 s{T+2}, s{S_WV}, 2"); e(f"s_mul_i32 s{T+2}, s{T+2}, 5120"); e(f"v_add_u32 v{V_EXR}, s{T+2}, v{V_Z}")
    e(f"s_add_u32 s{T+2}, s{S_WV}, 1"); e(f"s_and_b32 s{T+2}, s{T+2}, 3"); e(f"s_mul_i32 s{T+2}, s{T+2}, 5120")
    e(f"v_add_u32 v{V_EXR+1}, s{T+2}, v{V_Z}")
    e(f"s_mul_i32 s{T+6}, s{S_WV}, 2816"); e(f"s_add_u32 s{T+6}, s{T+6}, {ST_OFF}")
    e(f"v_mul_u32_u24 v{t}, 176, v{t+6}")
    e(f"v_lshl_add_u32 v{t}, v{t+2}, 3, v{t}"); e(f"v_add_u32 v{V_OW}, s{T+6}, v{t}")
    e(f"s_lshl_b32 s{T+4}, s{RB}, 2"); e(f"s_add_u32 s{T+4}, s{T+4}, s{S_WV}"); e(f"s_mul_i32 s{T+4}, s{T+4}, 20480")
    e(f"s_mul_i32 s{T+5}, s{NJ}, 160"); e(f"s_add_u32 s{T+4}, s{T+4}, s{T+5}")
    for k in range(3):
        e(f"v_add_u32 v{t}, {64*k}, v{L}")
        e(f"v_mul_u32_u24 v{t+1}, 205, v{t}"); e(f"v_lshrrev_b32 v{t+1}, 11, v{t+1}")
        e(f"v_mul_u32_u24 v{t+3}, 10, v{t+1}"); e(f"v_sub_u32 v{t+3}, v{t}, v{t+3}"); e(f"v_lshlrev_b32 v{t+3}, 4, v{t+3}")
        e(f"v_mul_u32_u24 v{t+4}, 176, v{t+1}"); e(f"v_add3_u32 v{V_OR+k}, v{t+4}, v{t+3}, s{T+6}")
        e(f"v_mul_u32_u24 v{t+4}, 1280, v{t+1}"); e(f"v_add3_u32 v{V_OG+k}, v{t+4}, v{t+3}, s{T+4}")
    e(f"v_lshrrev_b32 v{t}, 5, v{L}"); e(f"v_lshlrev_b32 v{t}, 30, v{t}")
    e(f"v_add_u32 v{V_OG+2}, v{V_OG+2}, v{t}")
    e(f"s_lshl_b32 s{T+4}, s{RB}, 7"); e(f"s_add_u32 s{T+4}, s{T+4}, {FLAG_OFF}")
    e(f"v_min_u32 v{t}, 23, v{L}"); e(f"v_lshlrev_b32 v{t}, 2, v{t}"); e(f"v_add_u32 v{V_FLG}, s{T+4}, v{t}")


Z_OPS = [("Z", i, u) for i in range(12) for u in range(5)]


def op_parts(op, P):
    k, u, p = op
    pre = []
    if k == "X":
        pre += [f"s_add_u32 m0, s{S_M0X}, {P.XBASE + (u % P.NX) * P.XSZ + p * 4096}"]
        return pre, f"buffer_load_dwordx4 v{V_XO+p}, s[{S_X}:{S_X+3}], s{S_XT+u if u else S_XK} offen lds"
    if k == "W":
        if p == 0 and u > 0:
            pre += [f"s_add_u32 s{S_WK}, s{S_WK}, 98304" if u & 1 else f"s_mul_i32 s{S_WK}, s{S_XT + u//2}, 1536"]
        a, b = P.w_op(u, p)
        return pre + a, b
    if k == "P":
        pre += [f"s_lshl_b32 m0, s{S_M0X}, 1", f"s_add_u32 m0, m0, {PT_OFF + p * 1024}"]
        return pre, f"buffer_load_dwordx4 v{V_PTS}, s[{S_W2}:{S_W2+3}], s{S_PT0+p} offen nt lds"
    if k == "Z":
        if p == 0 and u > 0:
            pre += [f"s_add_u32 s{S_ZK}, s{S_ZK}, 5120", f"s_sub_u32 s{S_T}, s{S_ZK}, 61440",
                    f"s_cmp_eq_u32 s{S_ZK}, s{S_ZEND}", f"s_cselect_b32 s{S_ZK}, s{S_T}, s{S_ZK}"]
        r = 20 * u + 4 * p
        off = f" offset:{1024*p}" if 0 < p < 4 else ""
        return pre, f"buffer_load_dwordx4 a[{r}:{r+3}], v{V_Z + (p == 4)}, s[{S_H}:{S_H+3}], s{S_ZK} offen{off} sc1"
    raise ValueError(op)


class Q:
    def __init__(self, e, ops, P=None):
        self.e, self.ops, self.i, self.armed, self.P = e, list(ops), 0, None, P

    def left(self):
        return len(self.ops) - self.i

    def arm(self):
        pre, ins = op_parts(self.ops[self.i], self.P)
        for s in pre:
            self.e(s)
        self.armed = ins

    def fire(self):
        if "nodma" in self.e.cfg.diag and self.ops[self.i][0] in "XW" and self.i > 16:
            self.armed = "s_nop 0"
        self.e.vmem(self.armed, self.ops[self.i])
        self.armed = None
        self.i += 1

    def issue(self, n=1):
        for _ in range(n):
            if not self.left():
                return
            if self.armed is None:
                self.arm()
            if self.armed.endswith("lds"):
                self.e("s_nop 0")
            self.fire()


def spin_dbg(e, cfg, sfx):
    e.stamp("dbg check")
    e(f"s_mov_b32 s{S_SPIN}, {cfg.spin}")
    e(f"v_cmp_eq_u32 vcc, 1, v{V_DBG}")
    e("s_nop 1")
    e(f"s_cbranch_vccnz L_dbg_ok{sfx}")
    if cfg.exfil == "dbgspin":
        e(f"s_sub_u32 s{S_SPIN}, s{S_SPIN}, 1")
    e.label(f"L_dbg_spin{sfx}")
    e(f"v_mov_b32 v{V_DBG}, 0")
    e("s_sleep 2")
    e(f"buffer_load_dword v{V_DBG}, v{V_DBG}, s[{S_DBG}:{S_DBG+3}], 0 offen sc1")
    e("s_waitcnt vmcnt(0)")
    e(f"v_cmp_eq_u32 vcc, 1, v{V_DBG}")
    e("s_nop 1")
    e(f"s_cbranch_vccnz L_dbg_ok{sfx}")
    e(f"s_sub_u32 s{S_SPIN}, s{S_SPIN}, 1")
    e(f"s_cmp_lg_u32 s{S_SPIN}, 0")
    e(f"s_cbranch_scc1 L_dbg_spin{sfx}")
    e.label(f"L_dbg_ok{sfx}")
    if cfg.exfil == "dbgspin":
        e(f"s_sub_u32 s98, {cfg.spin}, s{S_SPIN}"); e("s_mul_i32 s98, s98, 25"); e("s_add_u32 s98, s98, s100")
    e.stamp("dbg ok")


def zflag_load():
    return f"buffer_load_dwordx4 v[{V_ZF}:{V_ZF+3}], v{V_Z}, s[{S_H}:{S_H+3}], s{S_T+1} offen sc1"


def check_zflags(e, cfg, sfx):
    def test():
        e(f"v_and_b32 v{V_ZF}, v{V_ZF}, v{V_ZF+1}")
        e(f"v_and_b32 v{V_ZF+2}, v{V_ZF+2}, v{V_ZF+3}")
        e(f"v_and_b32 v{V_ZF}, v{V_ZF}, v{V_ZF+2}")
        e(f"v_cmp_ne_u32 vcc, 1, v{V_ZF}")
        e("s_nop 1")
        e(f"s_cbranch_vccz L_zf_ok{sfx}")
    e.stamp("zf check")
    test()
    e(f"s_mov_b32 s{S_SPIN}, {cfg.spin}")
    e.label(f"L_zf_spin{sfx}")
    e("s_sleep 2")
    e(zflag_load())
    e("s_waitcnt vmcnt(0)")
    test()
    e(f"s_sub_u32 s{S_SPIN}, s{S_SPIN}, 1")
    e(f"s_cmp_lg_u32 s{S_SPIN}, 0")
    e(f"s_cbranch_scc1 L_zf_spin{sfx}")
    e.label(f"L_zf_ok{sfx}")
    e.stamp("zf ok")


def store_one(e, srd_, voff, soff, mask):
    e(f"v_mov_b32 v{V_T+16}, 1")
    if voff is None:
        voff = V_T + 17
        e(f"v_mov_b32 v{voff}, 0")
    e(f"s_mov_b64 exec, {mask}")
    e(f"buffer_store_dword v{V_T+16}, v{voff}, s[{srd_}:{srd_+3}], {soff} offen sc1")
    e("s_mov_b64 exec, -1")


def phase1(e, cfg, P):
    sfx = P.name
    hx = P.NXI // 2
    W = lambda n: [("W", n, p) for p in range(P.NWI)]
    xo = [0, 3, 1, 4, 2, 5] if P.NXI == 6 else [0, 2, 1, 3]
    stream = W(0) + [("X", 0, j) for j in xo] + W(1) + [("X", 1, j) for j in xo]
    for n in range(2, 20):
        kb = (n + 1) // 2
        if n % 2 == 1 and kb < 10:
            stream += [("X", kb, j) for j in range(hx)]
        stream += W(n)
        if n == cfg.p_after:
            stream += [("P", 0, 0), ("P", 0, 1)]
        if n % 2 == 1 and kb < 10:
            stream += [("X", kb, j) for j in range(hx, P.NXI)]
    stream += Z_OPS[:cfg.tail_ops]
    q = Q(e, stream, P)

    def needed(n):
        return max(i for i, (k, u, p) in enumerate(stream) if (k == "X" and u == n // 2) or (k == "W" and u == n)) + 1

    def ahead(n):
        return cfg.A + (cfg.Aend - cfg.A) * max(n - 3, 0) // 14 if n < 17 else cfg.Aend

    def fits(i, freed):
        k, u, p = stream[i]
        if k == "X":
            return u < P.NX or (u - P.NX) * 2 + 2 <= freed
        if k == "W":
            return u < P.NW or (u - P.NW) + 1 <= freed
        return True

    def is_needed(n):
        ops = set(stream[:needed(n)])
        return lambda t: t in ops

    P.early(e)
    first_srds(e, cfg)
    q.issue(needed(0))
    if cfg.wsbase:
        e(f"s_add_u32 s6, s6, {cfg.wsbase << 20}"); e("s_addc_u32 s7, s7, 0")
    srd(e, S_H, 6, (STAMP_OFF + (1 << 20)) if cfg.stamps else WS_REC)
    if P.name == "A":
        e(f"s_or_b32 s{S_T}, s2, s{S_WV}")
        e("s_cbranch_scc1 L_noclear")
        for k in range(4):
            e(f"v_mov_b32 v{V_T+4+k}, 0")
        e(f"v_lshlrev_b32 v{V_T+8}, 4, v{V_LANE}")
        e(f"s_mov_b32 s{S_T}, {FLAG_OFF}"); e(f"s_mov_b32 s{S_T+1}, {ZFLAG_OFF}")
        for k in range(4):
            e(f"buffer_store_dwordx4 v[{V_T+4}:{V_T+7}], v{V_T+8}, s[{S_H}:{S_H+3}], s{S_T} offen offset:{1024*k} sc1")
        e(f"buffer_store_dwordx4 v[{V_T+4}:{V_T+7}], v{V_T+8}, s[{S_H}:{S_H+3}], s{S_T+1} offen sc1")
        e("s_nop 1")
        e.label("L_noclear")
    P.late(e)
    setup_common_late(e, cfg)
    if cfg.exfil == "skew":
        e(f"s_not_b32 s96, s100")
        e(f"v_mov_b32 v{V_T}, s96"); e(f"v_mov_b32 v{V_T+1}, 4")
        e("s_mov_b64 exec, 1")
        e(f"buffer_atomic_umax v{V_T}, v{V_T+1}, s[{S_DBG}:{S_DBG+3}], 0 offen sc1")
        e("s_mov_b64 exec, -1")
    e.stamp("setup done")
    q.issue(cfg.A)
    e.wait(vm=is_needed(0))
    if P.name == "A":
        e(f"s_or_b32 s{S_T}, s2, s{S_WV}")
        e("s_cbranch_scc1 L_noclear2")
        store_one(e, S_DBG, None, "0", "1")
        e.label("L_noclear2")
    e.stamp("first data")
    e("s_barrier")
    for tag, txt in P.reads(0):
        e.ds(txt, tag)
    zok = "noside" in cfg.diag
    freed = 0
    for n in range(20):
        plan = P.read_plan(n)
        mf = P.mfmas(n)
        sg = P.side_gaps if "noside" not in cfg.diag else (99, 99, 99, 99)
        for g, (need, txt) in enumerate(mf):
            if g == P.bar_gap:
                if n < 19:
                    tgt = min(needed(n + 1), len(stream))
                    while q.armed is not None or q.i < tgt:
                        assert fits(q.i, freed)
                        q.issue()
                e.wait(lg=ALL)
            else:
                e.wait(lg=lambda t: t in need)
            e(txt)
            if g == P.bar_gap:
                if n < 19:
                    nd = is_needed(n + 1)
                    if n == cfg.u_zflag:
                        e.wait(vm=lambda t: nd(t) or kind("pts", "dbg")(t))
                    elif n == cfg.u_pt - 1:
                        e.wait(vm=lambda t: nd(t) or kind("P")(t))
                    else:
                        e.wait(vm=nd)
                e("s_barrier")
                freed = n + 1
                if str(n) in cfg.p1stamps.split(","):
                    e.stamp(f"p1 unit {n}")
            if q.armed is not None:
                q.fire()
            for tag, rd in plan.get(g, []):
                e.ds(rd, tag)
            if n == cfg.u_pt and g in sg[:2]:
                c2 = sg.index(g)
                for jj in range(2):
                    r = V_PT + 4 * c2 + 2 * jj
                    e.ds(f"ds_read_b64_tr_b16 v[{r}:{r+1}], v{V_PTA} offset:{jj*4096 + c2*32}", ("pt", c2))
            elif n == cfg.u_pt + 1 and g in sg[:2]:
                c2 = sg.index(g)
                e.wait(lg=lambda t: t == ("pt", c2))
                e.vmem(f"buffer_store_dwordx4 v[{V_PT+4*c2}:{V_PT+4*c2+3}], v{V_Z}, s[{S_H}:{S_H+3}], s{S_PS+c2} offen sc1", ("pts",))
            elif n == cfg.u_pt + 1 and g == sg[2]:
                e(f"v_mov_b32 v{V_DBG}, 0")
            elif n == cfg.u_pt + 1 and g == sg[3]:
                e.vmem(f"buffer_load_dword v{V_DBG}, v{V_DBG}, s[{S_DBG}:{S_DBG+3}], 0 offen sc1", ("dbg",))
            elif n == cfg.u_zflag + (sg[2] < P.bar_gap) and g == sg[2]:
                spin_dbg(e, cfg, sfx)
                e(f"s_cmp_lg_u32 s{S_WV}, 0")
                e(f"s_cbranch_scc1 L_nozflag{sfx}")
                store_one(e, S_H, None, f"s{S_ZFLAG}", "1")
                e.label(f"L_nozflag{sfx}")
            elif n == cfg.u_zpoll and g == sg[2]:
                e(f"s_mov_b32 s{S_T+1}, {ZFLAG_OFF}")
                e.vmem(zflag_load(), ("zf",))
            elif n == cfg.u_zpoll + 2 and g == sg[2]:
                e.wait(vm=kind("zf"))
                check_zflags(e, cfg, sfx)
                zok = True
            nb = n + 2 if g >= P.bar_gap else n + 1
            tgt = min(needed(nb) + ahead(nb), len(stream)) if nb < 20 else len(stream)
            rem = tgt - q.i
            if q.armed is None and rem > 0 and g + 1 < len(mf) and g + 1 != P.bar_gap:
                k = min(max(rem, 5), len(P.dma_gaps))
                if g in P.dma_gaps[:k] and fits(q.i, freed) and (q.ops[q.i][0] != "Z" or zok):
                    q.arm()
        assert q.armed is None
    while q.left():
        q.issue()
    e.stamp("p1 mfma issued")
    e.stamp("p1 mfma issued rt", real=True)


def epilogue1(e, cfg, q):
    e("s_nop 7")
    zs = [int(v) for v in cfg.epi_z.split(",")]
    for n in range(6):
        a = V_ACC + 16 * n
        t = V_T + 8 * (n & 1)
        d = V_FR + 4 * n
        budget = [zs[n]]
        def tick():
            if budget[0] > 0:
                budget[0] -= 1
                q.issue()
        for k in range(4):
            e(f"v_pk_mul_f32 v[{t+2*k}:{t+2*k+1}], v[{a+2*k}:{a+2*k+1}], s[{S_NL2E}:{S_NL2E+1}]")
        tick()
        for k in range(8):
            e(f"v_exp_f32 v{t+k}, v{t+k}")
        for k in range(4):
            e(f"v_pk_add_f32 v[{t+2*k}:{t+2*k+1}], v[{t+2*k}:{t+2*k+1}], 1.0 op_sel_hi:[1,0]")
        tick()
        for k in range(8):
            e(f"v_rcp_f32 v{t+k}, v{t+k}")
            if k == 3:
                tick()
        for k in range(4):
            e(f"v_pk_mul_f32 v[{t+2*k}:{t+2*k+1}], v[{t+2*k}:{t+2*k+1}], v[{a+2*k}:{a+2*k+1}]")
        for k in range(4):
            e(f"v_pk_mul_f32 v[{t+2*k}:{t+2*k+1}], v[{t+2*k}:{t+2*k+1}], v[{a+8+2*k}:{a+8+2*k+1}]")
        for k in range(4):
            e(f"v_cvt_pk_bf16_f32 v{d+k}, v{t+2*k}, v{t+2*k+1}")
        e.vmem(f"buffer_store_dwordx4 v[{d}:{d+3}], v{V_HST}, s[{S_H}:{S_H+3}], s{S_HS+n} offen {cfg.hflags}", ("hst",))
    e.stamp("h stores issued")


def handoff(e, cfg, q):
    q.issue(cfg.pre_z)
    e(f"s_mov_b32 s{S_HK}, s{S_HSV}")
    e(f"s_add_u32 s{S_T+2}, s{S_CI}, 49152")
    for i in range(1, 12):
        e(f"s_add_u32 s{S_HK+i}, s{S_HK+i-1}, 4096")
        e(f"s_cmp_eq_u32 s{S_HK+i}, s{S_T+2}")
        e(f"s_cselect_b32 s{S_HK+i}, s{S_CI}, s{S_HK+i}")
    e.wait(vm=kind("hst"))
    e("s_barrier")
    e.stamp("h stores acked")
    e(f"s_cmp_lg_u32 s{S_WV}, 0")
    e("s_cbranch_scc1 L_nohflag")
    store_one(e, S_H, V_FLO, "0", "15")
    e.label("L_nohflag")
    q.issue(cfg.post_z)
    e(f"s_mov_b32 s{S_SPIN}, {cfg.spin}")
    e.label("L_poll")
    e(f"buffer_load_dword v{V_T}, v{V_FLG}, s[{S_H}:{S_H+3}], 0 offen sc1")
    e("s_waitcnt vmcnt(0)")
    e(f"v_cmp_ne_u32 vcc, 1, v{V_T}")
    e("s_nop 1")
    e("s_cbranch_vccz L_poll_ok")
    e(f"s_sub_u32 s{S_SPIN}, s{S_SPIN}, 1")
    e(f"s_cmp_lg_u32 s{S_SPIN}, 0")
    e("s_cbranch_scc1 L_poll")
    e.label("L_poll_ok")
    e.vm = []
    e.stamp("flags seen")
    e.stamp("flags seen rt", real=True)


def phase2(e, cfg, q):
    NH = cfg.NH
    nload = [0]

    def hload():
        n = nload[0]
        if n >= 48:
            return
        ps, i = divmod(n, 12)
        r = V_HB + 4 * (n % NH)
        e.vmem(f"buffer_load_dwordx4 v[{r}:{r+3}], v{V_HL+ps}, s[{S_H}:{S_H+3}], s{S_HK+i} offen {cfg.hflags}", ("h", n))
        nload[0] += 1

    for k in range(NH - 1):
        hload()
        if q.left() and k >= 2:
            q.issue(1)
    rd_plan = {(7, 1): 0, (7, 3): 1, (8, 1): 2, (8, 3): 3, (9, 1): 4}
    for n in range(48):
        ps, i = divmod(n, 12)
        acc = V_A2 + 20 * (ps & 1)
        oth = V_A2 + 20 * (1 - (ps & 1))
        hb = V_HB + 4 * (n % NH)
        if ps == 0:
            while q.left() and q.ops[q.i][1] <= i:
                q.issue()
        for u in range(5):
            e.wait(vm=lambda t: t == ("h", n) or (t is not None and t[0] == "Z" and (t[1], t[2]) <= (i, u)))
            if i == 0 and ps >= 2:
                e.wait(lg=lambda t: t == ("exr", ps - 1, u))
            r = 20 * i + 4 * u
            c = "0" if (i == 0 and ps < 2) else f"v[{acc+4*u}:{acc+4*u+3}]"
            e(f"v_mfma_f32_16x16x32_bf16 v[{acc+4*u}:{acc+4*u+3}], a[{r}:{r+3}], v[{hb}:{hb+3}], {c}")
            if u == 0:
                hload()
            elif q.left() and u in (1, 3):
                q.issue()
            if ps >= 1 and 1 <= i <= 5 and u == 2:
                w = i - 1
                e.ds(f"ds_write_b128 v{V_EXW}, v[{oth+4*w}:{oth+4*w+3}] offset:{EX_OFF + (ps-1)*20480 + w*1024}", ("exw", ps))
            if ps >= 1 and (i, u) in rd_plan:
                w = rd_plan[(i, u)]
                e.ds(f"ds_read_b128 v[{oth+4*w}:{oth+4*w+3}], v{V_EXR + (ps == 3)} offset:{EX_OFF + (ps-1)*20480 + w*1024}", ("exr", ps, w))
            if ps >= 1 and i == 7 and u == 0:
                e.wait(lg=kind("exw"))
                e("s_barrier")
        if n == 11:
            e.stamp("p2 pass0 done")
    e.stamp("p2 mfma issued")
    e.wait(lg=ALL)
    e("s_nop 7")
    t = V_T
    k1, k0 = V_A2 + 20, V_A2
    for u in range(5):
        for k in range(2):
            e(f"v_pk_add_f32 v[{k1+4*u+2*k}:{k1+4*u+2*k+1}], v[{k1+4*u+2*k}:{k1+4*u+2*k+1}], v[{k0+4*u+2*k}:{k0+4*u+2*k+1}]")
        for k in range(2):
            e(f"v_cvt_pk_bf16_f32 v{t+2*u+k}, v{k1+4*u+2*k}, v{k1+4*u+2*k+1}")
        e.ds(f"ds_write_b64 v{V_OW}, v[{t+2*u}:{t+2*u+1}] offset:{32*u}")
    e.wait(lg=ALL)
    for k in range(3):
        e.ds(f"ds_read_b128 v[{V_HB+4*k}:{V_HB+4*k+3}], v{V_OR+k}", ("o", k))
    for k in range(3):
        e.wait(lg=lambda t: t == ("o", k))
        e.vmem(f"buffer_store_dwordx4 v[{V_HB+4*k}:{V_HB+4*k+3}], v{V_OG+k}, s[{S_OUT}:{S_OUT+3}], 0 offen {cfg.oflags}")


def write_stamps(e, cfg):
    if not cfg.stamps:
        return
    e("s_waitcnt vmcnt(0)")
    e.stamp("end")
    e(f"s_memrealtime s[{S_T+1}:{S_T+2}]")
    e("s_waitcnt lgkmcnt(0)")
    e(f"s_cmp_lg_u32 s{S_WV}, 0")
    e("s_cbranch_scc1 L_end")
    e(f"s_lshl_b32 s{S_T}, s2, 7"); e(f"s_add_u32 s{S_T}, s{S_T}, {STAMP_OFF}")
    e(f"v_mov_b32 v{V_T+1}, 0")
    vals = [f"s{S_STAMP}", f"s{S_T+1}"]
    for name, (i, real) in list(e.slots.items())[2:]:
        e(f"s_sub_u32 s{S_STAMP+2*i}, s{S_STAMP+2*i}, s{S_STAMP if real else S_STAMP + 2}")
        vals.append(f"s{S_STAMP+2*i}")
    for i, v in enumerate(vals):
        e(f"v_mov_b32 v{V_T}, {v}")
        e(f"buffer_store_dword v{V_T}, v{V_T+1}, s[{S_H}:{S_H+3}], s{S_T} offen offset:{4*i}")
        e("s_nop 1")


HEADER = """; SwiGLU FFN: out = (silu(x@w1) * (x@w3)) @ w2, bf16, x[2048,640] w1,w3[640,1536] w2[1536,640]
; @launch grid=(256,1,1) block=(256,1,1) lds=163840
"""


def generate(cfg):
    e = E(cfg)
    e.L += ['.amdgcn_target "amdgcn-amd-amdhsa--gfx950"', ".text", f".globl {KN}", ".p2align 8",
            f".type {KN},@function", f"{KN}:"]
    if cfg.diag_rt:
        e("s_memrealtime s[100:101]")
    entry(e, cfg)
    phase1(e, cfg, PathA(cfg))
    vmA = list(e.vm)
    e.label("L_join")
    q = Q(e, Z_OPS[cfg.tail_ops:])
    if not cfg.diag:
        epilogue1(e, cfg, q)
        handoff(e, cfg, q)
        phase2(e, cfg, q)
    if cfg.diag_rt:
        e(f"s_mov_b32 s97, {cfg.diag_rt}")
        if cfg.exfil == "natural end":
            e("s_waitcnt vmcnt(0)")
            e("s_memrealtime s[98:99]")
        if cfg.exfil == "skew":
            e("s_waitcnt vmcnt(0) lgkmcnt(0)")
            e(f"v_mov_b32 v{V_T}, 4")
            e(f"buffer_load_dword v{V_T+1}, v{V_T}, s[{S_DBG}:{S_DBG+3}], 0 offen sc1")
            e("s_waitcnt vmcnt(0)")
            e(f"v_not_b32 v{V_T+1}, v{V_T+1}")
            e("s_nop 1")
            e(f"v_readfirstlane_b32 s96, v{V_T+1}")
            e("s_nop 3")
            e("s_sub_u32 s98, s100, s96")
            e("s_lshl_b32 s98, s98, 2"); e("s_add_u32 s97, s97, s98")
        elif cfg.exfil:
            e("s_waitcnt lgkmcnt(0)")
            e("s_sub_u32 s98, s98, s100")
            e("s_lshl_b32 s98, s98, 2"); e("s_add_u32 s97, s97, s98")
        e("s_min_u32 s97, s97, 30000")
        e.label("L_diag")
        e(f"s_memrealtime s[{S_T+1}:{S_T+2}]")
        e("s_waitcnt lgkmcnt(0)")
        e(f"s_sub_u32 s{S_T+1}, s{S_T+1}, s100")
        e(f"s_cmp_lt_u32 s{S_T+1}, s97")
        e("s_cbranch_scc1 L_diag")
    write_stamps(e, cfg)
    e("s_endpgm")
    e.label("L_pathB")
    e.vm, e.lg = [], []
    phase1(e, cfg, PathB(cfg))
    assert all(t[0] == "Z" for t in vmA) and all(t[0] == "Z" for t in e.vm) and not e.lg
    e("s_branch L_join")
    e.label("L_end")
    e("s_endpgm")
    e.L += ['.section .rodata,"a"', ".p2align 6", f".amdhsa_kernel {KN}",
            "  .amdhsa_next_free_vgpr 512", "  .amdhsa_next_free_sgpr 102", "  .amdhsa_accum_offset 256",
            "  .amdhsa_group_segment_fixed_size 0", "  .amdhsa_kernarg_size 56", "  .amdhsa_user_sgpr_count 2",
            "  .amdhsa_user_sgpr_kernarg_segment_ptr 1", "  .amdhsa_system_sgpr_workgroup_id_x 1",
            "  .amdhsa_float_denorm_mode_32 3", ".end_amdhsa_kernel"]
    if cfg.stamps:
        print("stamp columns: rt_start, rt_len,", ", ".join(list(e.slots)[2:]))
    return HEADER + "\n".join(e.L) + "\n"


def main():
    ap = argparse.ArgumentParser()
    ap.add_argument("-o", default="standalone__glu_gated_swiglu__prompt.s")
    ap.add_argument("opts", nargs="*")
    a = ap.parse_args()
    cfg = Cfg()
    for o in a.opts:
        k, v = o.split("=", 1)
        cur = getattr(cfg, k)
        if isinstance(cur, bool):
            v = v not in ("0", "False", "false")
        elif isinstance(cur, int):
            v = int(v)
        setattr(cfg, k, v)
    open(a.o, "w").write(generate(cfg))


if __name__ == "__main__":
    main()
```
